```python
import torch

def _softmax(x, axis=-1):
    return torch.softmax(x, dim=axis)
def _gelu(x):
    return torch.nn.functional.gelu(x, approximate="tanh")
def _silu(x):
    return torch.nn.functional.silu(x)
def _sigmoid(x):
    return torch.sigmoid(x)
def _layernorm(x, axis=-1, eps=1e-5):
    m = x.mean(dim=axis, keepdim=True)
    v = x.var(dim=axis, keepdim=True, unbiased=False)
    return (x - m) / torch.sqrt(v + eps)
def _scatter_add(tgt, idx, src, axis=0):
    return tgt.clone().index_add_(axis, idx, src)
def _segment_sum(src, seg, n):
    out = torch.zeros((n,) + src.shape[1:], dtype=src.dtype)
    return out.index_add_(0, seg, src)
def _pad(x, pw):
    flat = tuple(v for pair in reversed(pw) for v in pair)
    return torch.nn.functional.pad(x, flat)

kernel_name = 'parallel_sum__gqa_block_cached__dense_activation_silu__decode'

def setup_inputs():

    _w = (lambda a: (lambda t: t.to(torch.bfloat16) if t.is_floating_point() else t)(torch.as_tensor(a)))
    def _A_setup():
        B, Sq, D = 4, 1, 512
        Hq, Hkv, Sk, Dh = 32, 8, 4096, 128
        assert Hq % Hkv == 0, (Hq, Hkv)
        return {
            "x": _w((lambda *s: torch.randn(*s, dtype=torch.bfloat16) * 0.05)(B, Sq, D)),
            "k_cache": _w((lambda *s: torch.randn(*s, dtype=torch.bfloat16) * 3.2)(B, Hkv, Sk, Dh)),
            "v_cache": _w((lambda *s: torch.randn(*s, dtype=torch.bfloat16) * 0.8)(B, Hkv, Sk, Dh)),
            "wq": _w((lambda *s: torch.randn(*s, dtype=torch.bfloat16) * 3.2)(D, Hq * Dh) * (D ** -0.5)),
            "wo": _w((lambda *s: torch.randn(*s, dtype=torch.bfloat16) * 0.8)(Hq * Dh, D) * ((Hq * Dh) ** -0.5)),
        }
    _A_in = _A_setup()

    def _B_setup():
        B, S, D, F = 4, 1, 512, 1792
        return {
            "x": _w((lambda *s: torch.randn(*s, dtype=torch.bfloat16) * 0.05)(B, S, D)),
            "w1": _w((lambda *s: torch.randn(*s, dtype=torch.bfloat16) * 3.2)(D, F) * (D ** -0.5)),
            "w2": _w((lambda *s: torch.randn(*s, dtype=torch.bfloat16) * 0.4)(F, D) * (F ** -0.5)),
        }
    _B_in = _B_setup()

    return {
        "A_x": _A_in["x"],
        "A_k_cache": _A_in["k_cache"],
        "A_v_cache": _A_in["v_cache"],
        "A_wq": _A_in["wq"],
        "A_wo": _A_in["wo"],
        "B_x": _B_in["x"],
        "B_w1": _B_in["w1"],
        "B_w2": _B_in["w2"],
    }

def reference(A_x, A_k_cache, A_v_cache, A_wq, A_wo, B_x, B_w1, B_w2):
    def _A_ref(x, k_cache, v_cache, wq, wo):
        B, Sq, D = x.shape
        Hq, Dh = 32, 128
        Hkv = k_cache.shape[1]
        rep = Hq // Hkv
        q = (lambda x, *d: x.permute(*d))((x @ wq).reshape(B, Sq, Hq, Dh), 0, 2, 1, 3)
        k = (lambda x, n, axis: torch.repeat_interleave(x, n, dim=axis))(k_cache, rep, axis=1)
        v = (lambda x, n, axis: torch.repeat_interleave(x, n, dim=axis))(v_cache, rep, axis=1)
        scores = torch.einsum("bhqd,bhkd->bhqk", q, k) * (Dh ** -0.5)
        p = _softmax(scores, axis=-1)
        o = torch.einsum("bhqk,bhkd->bhqd", p, v)
        return (lambda x, *d: x.permute(*d))(o, 0, 2, 1, 3).reshape(B, Sq, Hq * Dh) @ wo

    def _B_ref(x, w1, w2):
        h = torch.einsum("bsd,df->bsf", x, w1)
        h = _silu(h)
        out = torch.einsum("bsf,fd->bsd", h, w2)
        return out

    x = A_x
    xn = _layernorm(x, axis=-1)
    return x + _A_ref(xn, A_k_cache, A_v_cache, A_wq, A_wo) + _B_ref(xn, B_w1, B_w2)
```

```python
import re

REG = re.compile(r'^(-|\|)?(abs\()?([vsa])(\d+|\[(\d+):(\d+)\])\)?\|?$')

def regs_of(tok):
    tok = tok.strip()
    if tok in ('vcc',): return [('s', 106), ('s', 107)]
    if tok == 'vcc_lo': return [('s', 106)]
    if tok == 'vcc_hi': return [('s', 107)]
    if tok == 'exec': return [('s', 126), ('s', 127)]
    if tok == 'm0': return [('s', 124)]
    m = REG.match(tok)
    if not m: return []
    k = m.group(3)
    if m.group(5) is not None:
        return [(k, i) for i in range(int(m.group(5)), int(m.group(6)) + 1)]
    return [(k, int(m.group(4)))]

TRANS = ('v_exp_f32', 'v_log_f32', 'v_rcp_f32', 'v_rsq_f32', 'v_sqrt_f32', 'v_sin_f32', 'v_cos_f32')

class Ins:
    def __init__(self, text):
        self.text = text
        t = text.split(';')[0].strip()
        self.label = t.endswith(':')
        self.directive = t.startswith('.')
        self.w, self.r = set(), set()
        self.kind = 'other'; self.states = 1
        self.srcc = set(); self.srcab = set(); self.dpp = False; self.passes = 0; self.store_data = set()
        if self.label or self.directive or not t:
            self.states = 0; self.op = ''; return
        sp = t.split(None, 1)
        self.op = op = sp[0]
        rest = sp[1] if len(sp) > 1 else ''
        ops = [o.strip() for o in rest.split(',')]
        if ops:
            last = ops[-1].split()
            mods = last[1:] if last else []
            ops[-1] = last[0] if last else ''
            clean = []
            for o in rest.split(','):
                o = o.strip()
                parts = o.split()
                if not parts: continue
                clean.append(parts[0])
                if len(parts) > 1: break
            ops = clean
        R = [regs_of(o) for o in ops]
        self.ops = ops
        if op == 's_nop':
            self.kind = 'nop'; self.states = int(ops[0]) + 1
        elif op.startswith('v_mfma'):
            self.kind = 'mfma'
            self.passes = 4 if '16x16' in op else 8
            if '4x4x4' in op: self.passes = 2
            self.w = set(R[0]); self.srcab = set(R[1]) | set(R[2]); self.srcc = set(R[3]); self.r = self.srcab | self.srcc
            self.dst = tuple(R[0]); self.cc = tuple(R[3])
        elif op.startswith('v_'):
            self.kind = 'valu'
            self.dpp = ('quad_perm' in t or 'row_' in t.replace('row_mask', '')) or op.endswith('_dpp')
            self.w = set(R[0])
            for x in R[1:]: self.r |= set(x)
            if op.startswith('v_permlane') and 'swap' in op:
                self.w |= set(R[1]); self.r |= set(R[0])
            if op.startswith(('v_fmac', 'v_dot2c', 'v_pk_fmac')) or self.dpp: self.r |= set(R[0])
            if op.startswith('v_cndmask') and len(ops) == 3: self.r |= set(regs_of('vcc'))
        elif op.startswith('ds_'):
            self.kind = 'ds'
            if op.startswith(('ds_read', 'ds_bpermute', 'ds_permute', 'ds_swizzle')) or '_rtn' in op:
                self.w = set(R[0]); [self.r.update(x) for x in R[1:]]
            else:
                [self.r.update(x) for x in R]
        elif op.startswith(('buffer_', 'global_')):
            self.kind = 'vmem'
            if 'load' in op and ' lds' not in t:
                self.w = set(R[0]); [self.r.update(x) for x in R[1:]]
            elif 'atomic' in op and ' sc0' in t:
                self.w = set(R[0]); [self.r.update(x) for x in R]
            else:
                [self.r.update(x) for x in R]
                if 'store' in op and ('x4' in op or 'x3' in op):
                    self.store_data = set(R[0]) if op.startswith('buffer_') else set(R[1])
        elif op.startswith('s_'):
            self.kind = 'salu'
            if op.startswith(('s_cmp', 's_cbranch', 's_branch', 's_waitcnt', 's_barrier', 's_sleep', 's_setprio', 's_endpgm', 's_bitcmp')):
                [self.r.update(x) for x in R]
            else:
                self.w = set(R[0]); [self.r.update(x) for x in R[1:]]
                if 'saveexec' in op: self.w |= set(regs_of('exec'))

def need(prev, cur):
    n = 0
    pv = {x for x in prev.w if x[0] != 's'}; ps = {x for x in prev.w if x[0] == 's'}
    if prev.kind == 'valu':
        if pv & cur.r:
            if cur.kind == 'valu' and cur.dpp: n = max(n, 2)
            if cur.op.startswith(('v_readlane', 'v_readfirstlane')): n = max(n, 1)
            if cur.op.startswith('v_permlane'): n = max(n, 2)
            if cur.kind == 'mfma': n = max(n, 2)
            if prev.op.startswith(TRANS) and cur.kind in ('valu', 'mfma'): n = max(n, 1)
        if ps & cur.r:
            if cur.kind == 'valu': n = max(n, 2)
            if cur.op.startswith(('v_readlane', 'v_writelane')): n = max(n, 4)
            if cur.kind == 'vmem': n = max(n, 5)
            if cur.kind == 'salu': n = max(n, 1)
    if prev.kind == 'mfma':
        p = prev.passes
        full = {2: 5, 4: 8, 8: 12, 16: 20}[p]
        if cur.kind == 'mfma':
            if prev.w & cur.srcab: n = max(n, full)
            if prev.w & cur.srcc:
                if cur.cc == prev.dst and cur.passes == p: n = max(n, 2 if p == 2 else 0)
                else: n = max(n, {2: 4, 4: 6, 8: 10, 16: 18}[p])
            elif prev.w & cur.w: n = max(n, full)
        elif cur.kind in ('valu', 'ds', 'vmem'):
            if prev.w & (cur.r | cur.w): n = max(n, full)
        if cur.kind == 'valu' and (prev.srcc & cur.w): n = max(n, {2: 1, 4: 3, 8: 7, 16: 15}[p])
    if prev.store_data and (prev.store_data & cur.w):
        n = max(n, 2 if cur.kind in ('valu', 'mfma') else 1)
    return n

class Asm:
    def __init__(self):
        self.L = []
    def __call__(self, text):
        for ln in text.split('\n'):
            ln = ln.strip()
            if ln: self.L.append(ln)
    def label(self, name): self.L.append(name + ':')
    def finish(self):
        out = []; hist = []
        for t in self.L:
            ins = Ins(t)
            if ins.states:
                req = 0; dist = 0
                for p in reversed(hist):
                    if dist >= 20: break
                    if p.states == 0: continue
                    k = need(p, ins)
                    if k - dist > req: req = k - dist
                    dist += p.states
                while req > 0:
                    c = min(req, 16)
                    nop = Ins(f's_nop {c-1}')
                    hist.append(nop); out.append('    ' + nop.text); req -= c
                if ins.op in ('s_branch', 's_endpgm'):
                    hist.append(ins); out.append('    ' + t); hist = []; continue
            hist.append(ins)
            out.append(t if (ins.label or ins.directive) else '    ' + t)
            hist = hist[-40:]
        return '\n'.join(out) + '\n'

def vr(a, n=1):
    return f'v{a}' if n == 1 else f'v[{a}:{a+n-1}]'
def sr(a, n=1):
    return f's{a}' if n == 1 else f's[{a}:{a+n-1}]'
```

```python
import sys
from asmlib import *
NAME = "parallel_sum__gqa_block_cached__dense_activation_silu__decode"

EP, QP, HP, ST, OP, FP, STAMP = 0x0, 0x1000, 0xC4000, 0x138000, 0x140000, 0x180000, 0x300000
WS_SIZE = 0x400000
F_P1, F_MIX, F_Q, F_CLR, F_P, F_VISS, F_OCNT, F_FW, F_PUB, F_FP, F_WO, F_STAT, F_KISS = 0, 1, 2, 3, 4, 8, 9, 10, 11, 12, 13, 14, 15
L_ZERO, L_FW, L_Q, L_P, L_OS, L_AO, L_ST, L_X = 0x80, 0x180, 0x200, 0x600, 0x1600, 0x2e00, 0x3000, 0x3100
L_M, L_AH = 0x3900, 0x4100
F_MLP = F_PUB
F_P0 = 16
F_XN = 17
L_XN = 0x600
LDS_BYTES = 0x4200

HEADER = open("cdna_kernels/" + NAME + ".s.ref").read().split("; Override launch")[0]

def gen(stamps=False, gate_v=True, wo_sig=30, pk=9, pv=12, pl=0, kgate=True, fast=True, combine=True, fk=1, first_plain=False, fin_sleep=0, qplain=False, hplain=True, early_bar=False, layout=True, warm=True, tlb=0, abl=(), nt=(), kpre=4, lateclr=True, prog=True, pipe2=True, late_hp=True, diag=False, touch=(), diag2=False, xlast=False, two=False, depth=2, stag=4, numa=False, w1late=0, rot=0, lay2=True, g4k=0, omap='w0 w1 t0 t1 g0 g1 t2 t3 t4'):
    pos = {k: i + 8 for i, k in enumerate(omap.split())}
    toff = lambda tt: sum(((tt >> i) & 1) << pos[f't{i}'] for i in range(5))
    NT = lambda k: ' nt' if k in nt else ''
    a = Asm()
    uid = [0]
    def lab(p):
        uid[0] += 1; return f"L_{p}{uid[0]}"
    sX, sK, sV, sWQ, sWO, sW1, sW2, sOUT, sDBG, sWS = 4, 6, 8, 10, 12, 16, 18, 20, 22, 24
    sWAVE, sKVH, sJ, sB, sS, sW = 26, 27, 28, 29, 30, 31
    sSRD, sSRD2, sSRDW = 32, 36, 40
    sT0, sT1, sT2, sT3, sT4, sT5 = 44, 45, 46, 47, 48, 49
    sCNT, sSELLO, sSELHI, sTAG = 50, 51, 52, 53
    sM = 54
    sO = 62
    sHF, sCQ, sDB, sXCC = 70, 71, 72, 73
    sM1, sM2, sHI, sMIX = 74, 76, 78, 79
    sSTAMP = 80
    sTB = 96
    vZ, vONE = 6, 7
    WSRD = f"s[{sSRDW}:{sSRDW+3}]"
    def dstamp(k):
        if stamps and diag2: a(f"s_memrealtime s[{sSTAMP+2*k}:{sSTAMP+2*k+1}]")
    def stamp(k):
        if diag2 and k in (3, 4, 6): return
        if stamps: a(f"s_memrealtime s[{sSTAMP+2*k}:{sSTAMP+2*k+1}]")
    def finish_wave():
        a("s_branch L_stamp_out" if stamps else "s_endpgm")
    def srd(dst, ptr, size):
        a(f"s_mov_b32 s{dst}, s{ptr}"); a(f"s_mov_b32 s{dst+1}, s{ptr+1}")
        a(f"s_mov_b32 s{dst+2}, {hex(size)}"); a(f"s_mov_b32 s{dst+3}, 0x20000")
    def slab_srd(ptr):
        a(f"s_add_u32 s{sSRD}, s{ptr}, s{sT5}"); a(f"s_addc_u32 s{sSRD+1}, s{ptr+1}, 0")
        a(f"s_mov_b32 s{sSRD+2}, 0x20000"); a(f"s_mov_b32 s{sSRD+3}, 0x20000")
    def step(tt):
        h0, h1 = toff(tt) & ~4095, toff(tt + 1) & ~4095
        if h0 == h1: a("s_nop 0")
        elif h1 < 0x8000: a(f"s_movk_i32 s{sO}, {h1}")
        else: a(f"s_mov_b32 s{sO}, {h1}")
    def goff(dst, bit0, base):
        if pos['g1'] == pos['g0'] + 1:
            a(f"v_bfe_u32 v5, v0, {bit0}, 2"); a(f"v_lshl_add_u32 v{dst}, v5, {pos['g0']}, v{base}")
        else:
            a(f"v_bfe_u32 v5, v0, {bit0}, 1"); a(f"v_lshl_add_u32 v{dst}, v5, {pos['g0']}, v{base}")
            a(f"v_bfe_u32 v5, v0, {bit0+1}, 1"); a(f"v_lshl_add_u32 v{dst}, v5, {pos['g1']}, v{dst}")
    def lds_wait(flag, value, sleep=1, vt=5, addr=None):
        L, D = lab("w"), lab("d")
        a.label(L)
        a(f"ds_read_b32 v{vt}, v{vZ if addr is None else addr} offset:{flag*4}")
        a("s_waitcnt lgkmcnt(0)")
        a(f"v_readfirstlane_b32 s{sT0}, v{vt}")
        a(f"s_cmp_ge_u32 s{sT0}, {value}")
        a(f"s_cbranch_scc1 {D}")
        if sleep: a(f"s_sleep {sleep}")
        a(f"s_sub_u32 s{sCNT}, s{sCNT}, 1")
        a(f"s_cbranch_scc0 {L}")
        a("s_endpgm")
        a.label(D)
    def lds_signal(flag, addr=None):
        a("s_mov_b64 exec, 1")
        a(f"ds_add_u32 v{vZ if addr is None else addr}, v{vONE} offset:{flag*4}")
        a("s_mov_b64 exec, -1")
    def retry(L, sleep=0, masked=False):
        D = lab("d")
        if masked: a("s_mov_b64 exec, vcc")
        a(f"s_cbranch_vccz {D}")
        if sleep: a(f"s_sleep {sleep}")
        a(f"s_sub_u32 s{sCNT}, s{sCNT}, 1")
        a(f"s_cbranch_scc0 {L}")
        a("s_endpgm")
        a.label(D)
        if masked: a("s_mov_b64 exec, -1")
    def read_mix(vt):
        a(f"ds_read_b32 v{vt}, v{vZ} offset:{F_MIX*4}"); a("s_waitcnt lgkmcnt(0)"); a(f"v_readfirstlane_b32 s{sMIX}, v{vt}")
    def group_store(text):
        if not fast:
            a(text + " sc1"); return
        S, D = lab("s"), lab("d")
        a(f"s_cmp_lg_u32 s{sMIX}, 0"); a(f"s_cbranch_scc1 {S}")
        a(text); a(f"s_branch {D}")
        a.label(S); a(text + " sc1"); a.label(D)
    DPPM = "row_mask:0xf bank_mask:0xf"
    def allreduce(op, x, t, steps):
        for s in steps:
            if s == 'q1': a(f"{op}_dpp v{x}, v{x}, v{x} quad_perm:[1,0,3,2] {DPPM}")
            elif s == 'q2': a(f"{op}_dpp v{x}, v{x}, v{x} quad_perm:[2,3,0,1] {DPPM}")
            elif s in ('r1', 'r2', 'r4', 'r8'): a(f"{op}_dpp v{x}, v{x}, v{x} row_ror:{s[1:]} {DPPM}")
            else:
                a(f"v_mov_b32 v{t}, v{x}")
                a(f"v_permlane{s[1:]}_swap_b32 v{x}, v{t}")
                a(f"{op} v{x}, v{x}, v{t}")
    def rnd(x):
        a(f"v_cvt_pk_bf16_f32 v{x}, v{x}, v{x}"); a(f"v_and_b32 v{x}, 0xffff0000, v{x}")
    def perms(e, D, dst):
        x = e >> 1
        sel = sSELHI if e & 1 else sSELLO
        for m in range(4):
            a(f"v_perm_b32 v{dst+m}, v{D+4*(2*m+1)+x}, v{D+4*(2*m)+x}, s{sel}")
    def emap(e, mode):
        return (e >> 2, e & 3) if mode == 'A' else (e & 1, e >> 1)
    def block(D, A, BT, ACC, mode, first=False):
        perms(0, D, BT)
        seen = set()
        for e in range(8):
            if e < 7: perms(e + 1, D, BT + 4 * ((e + 1) & 1))
            ac, g = emap(e, mode)
            c = "0" if (first and ac not in seen) else vr(ACC + 4*ac, 4)
            seen.add(ac)
            a(f"v_mfma_f32_16x16x32_bf16 {vr(ACC+4*ac,4)}, {vr(A+4*g,4)}, {vr(BT+4*(e&1),4)}, {c}")
    def block8(D, A, BT, ACC, first=False):
        perms(0, D, BT)
        for e in range(8):
            if e < 7: perms(e + 1, D, BT + 4 * ((e + 1) & 1))
            c = "0" if (first and not e & 1) else vr(ACC + 4*(e >> 1), 4)
            a(f"v_mfma_f32_16x16x32_bf16 {vr(ACC+4*(e>>1),4)}, {vr(A+4*(e&1),4)}, {vr(BT+4*(e&1),4)}, {c}")
    def mask2(src, A):
        for v in range(2):
            for m in range(4):
                a(f"v_cndmask_b32 v{A+4*v+m}, 0, v{src+m}, s[{sM1+2*v}:{sM1+2*v+1}]")
    def dense8(ACC):
        for aa in range(4):
            for p in (0, 2): a(f"v_mov_b32_dpp v{ACC+4*aa+p}, v{ACC+4*aa+p+1} row_ror:8 row_mask:0x5 bank_mask:0xc")
        for aa in range(4):
            for p in (0, 2): a(f"v_mov_b32_dpp v{ACC+4*aa+p}, v{ACC+4*aa+p} row_ror:8 row_mask:0xa bank_mask:0x3")
        for aa in range(4):
            for p in (0, 2): a(f"v_mov_b32_dpp v{ACC+4*aa+p}, v{ACC+4*aa+p+1} quad_perm:[0,1,2,3] row_mask:0xa bank_mask:0xc")
        for aa in range(4): a(f"v_permlane16_swap_b32 v{ACC+4*aa}, v{ACC+4*aa+2}")
        for aa in range(4): a(f"v_add_f32 v{ACC+4*aa}, v{ACC+4*aa}, v{ACC+4*aa+2}")
    def dense_to_lds(ACC, base):
        a("v_lshlrev_b32 v4, 5, v0"); a("v_and_b32 v4, 0x3ff, v4"); a("v_lshrrev_b32 v5, 5, v0"); a("v_lshl_add_u32 v4, v5, 2, v4")
        for aa in range(4): a(f"ds_write_b32 v4, v{ACC+4*aa} offset:{base+8*aa}")
    def transpose4(R):
        a(f"v_permlane32_swap_b32 v{R}, v{R+2}"); a(f"v_permlane32_swap_b32 v{R+1}, v{R+3}")
        a(f"v_permlane16_swap_b32 v{R}, v{R+1}"); a(f"v_permlane16_swap_b32 v{R+2}, v{R+3}")
    def mask_variants(src, A):
        for g in range(4):
            for m in range(4):
                a(f"v_cndmask_b32 v{A+4*g+m}, 0, v{src+m}, s[{sM+2*g}:{sM+2*g+1}]")
    def set_masks():
        for g in range(4):
            v = 0x000F000F << (4 * g)
            a(f"s_mov_b32 s{sM+2*g}, {hex(v)}"); a(f"s_mov_b32 s{sM+2*g+1}, {hex(v)}")
    def set_sel():
        a(f"s_mov_b32 s{sSELLO}, 0x05040100"); a(f"s_mov_b32 s{sSELHI}, 0x07060302")
    def epoch_load():
        a(f"s_load_dword s{sTAG}, s[{sWS}:{sWS+1}], {EP}")
    def make_tag():
        a("s_waitcnt lgkmcnt(0)")
        a(f"s_mul_i32 s{sTAG}, s{sTAG}, 0x9e3779b1"); a(f"s_add_u32 s{sTAG}, s{sTAG}, 0x7f4a7c15")
        for k in range(4): a(f"s_bfe_u32 s{sTB+k}, s{sTAG}, {hex(0x80000 | (8*k))}")
        a(f"s_mov_b32 s{sHI}, 0xffffff00")
    def bytetag(R, n):
        for i in range(n): a(f"v_and_b32 v{R+i}, s{sHI}, v{R+i}")
        for i in range(n): a(f"v_or_b32 v{R+i}, s{sTB+(i&3)}, v{R+i}")
    def untag(R, n, T):
        for i in range(n): a(f"v_xor_b32 v{R+i}, s{sTB+(i&3)}, v{R+i}")
        nt = n // 8
        for t in range(nt): a(f"v_or3_b32 v{T+t}, v{R+8*t}, v{R+8*t+1}, v{R+8*t+2}")
        for t in range(nt): a(f"v_or3_b32 v{T+t}, v{T+t}, v{R+8*t+3}, v{R+8*t+4}")
        for t in range(nt): a(f"v_or3_b32 v{T+t}, v{T+t}, v{R+8*t+5}, v{R+8*t+6}")
        for t in range(nt): a(f"v_or_b32 v{T+t}, v{T+t}, v{R+8*t+7}")
        for t in range(1, nt): a(f"v_or_b32 v{T}, v{T}, v{T+t}")
        a(f"v_and_b32 v{T}, 0xff, v{T}")
        a(f"v_cmp_ne_u32 vcc, 0, v{T}")
    def reduce8to2(R):
        for i in range(4): a(f"v_permlane32_swap_b32 v{R+i}, v{R+4+i}")
        for i in (0, 2): a(f"v_pk_add_f32 {vr(R+i,2)}, {vr(R+i,2)}, {vr(R+4+i,2)}")
        for i in range(2): a(f"v_permlane16_swap_b32 v{R+i}, v{R+2+i}")
        a(f"v_pk_add_f32 {vr(R,2)}, {vr(R,2)}, {vr(R+2,2)}")

    secs = {}
    def section(name):
        secs.setdefault(name, []); a.L = secs[name]
    def bar():
        if not early_bar: a("s_barrier")
    section("pro")
    a(f"{NAME}_kernel:")
    stamp(0)
    a("s_memtime s[100:101]")
    a("s_cmp_ge_u32 s2, 256"); a("s_cbranch_scc1 L_exit")
    a("s_load_dwordx16 s[4:19], s[0:1], 0")
    a("s_load_dwordx4 s[20:23], s[0:1], 64")
    a("s_load_dwordx2 s[24:25], s[0:1], 80")
    a("v_lshrrev_b32 v1, 6, v0")
    a("v_and_b32 v0, 63, v0")
    a(f"v_mov_b32 v{vZ}, 0")
    a(f"v_readfirstlane_b32 s{sWAVE}, v1")
    a(f"v_mov_b32 v{vONE}, 0")
    a("v_lshlrev_b32 v2, 3, v0")
    a(f"ds_write_b64 v2, v[{vZ}:{vONE}]")
    a(f"v_mov_b32 v{vONE}, 1")
    a(f"s_and_b32 s{sKVH}, s2, 7"); a(f"s_lshr_b32 s{sJ}, s2, 3")
    a(f"s_lshr_b32 s{sB}, s{sJ}, 3"); a(f"s_and_b32 s{sS}, s{sJ}, 7")
    a(f"s_mov_b32 s{sCNT}, 0x40000")
    a("s_waitcnt lgkmcnt(0)"); a("s_mov_b32 s3, s100")
    a("v_lshrrev_b32 v2, 4, v0"); a("v_and_b32 v3, 15, v0")
    if not early_bar: a(f"s_cmp_lt_u32 s{sWAVE}, 4"); a("s_cbranch_scc1 L_H")
    a(f"s_lshl_b32 s{sT0}, s{sB}, 3"); a(f"s_add_u32 s{sT0}, s{sT0}, s{sKVH}"); a(f"s_lshl_b32 s{sT0}, s{sT0}, 20")
    a(f"s_lshl_b32 s{sT1}, s{sS}, 17"); a(f"s_add_u32 s{sT0}, s{sT0}, s{sT1}")
    a(f"s_and_b32 s{sW}, s{sWAVE}, 3")
    if pos['w1'] == pos['w0'] + 1: a(f"s_lshl_b32 s{sT1}, s{sW}, {pos['w0']}")
    else:
        a(f"s_and_b32 s{sT1}, s{sW}, 1"); a(f"s_lshl_b32 s{sT1}, s{sT1}, {pos['w0']}"); a(f"s_add_u32 s{sT0}, s{sT0}, s{sT1}"); a(f"s_lshr_b32 s{sT1}, s{sW}, 1"); a(f"s_lshl_b32 s{sT1}, s{sT1}, {pos['w1']}")
    a(f"s_add_u32 s{sT5}, s{sT0}, s{sT1}")
    if rot: a(f"s_mul_i32 s{sO}, s{sJ}, {4096*rot}"); a(f"s_mov_b32 s{sO+1}, 0x1f000"); a(f"s_and_b32 s{sO}, s{sO}, s{sO+1}")
    else: a(f"s_mov_b32 s{sO}, 0")
    if not early_bar: a(f"s_cmp_ge_u32 s{sWAVE}, 8"); a("s_cbranch_scc1 L_V")

    KD = 40
    a("v_lshlrev_b32 v4, 6, v2"); a("v_and_b32 v5, 3, v0"); a("v_lshl_add_u32 v4, v5, 4, v4")
    a("v_bfe_u32 v5, v0, 2, 2"); a("v_lshl_add_u32 v36, v5, 8, v4")
    goff(1, 2, 4)
    if tlb == 3:
        a(f"s_lshl_b32 s64, s2, 12"); a(f"s_lshl_b32 s65, s{sB}, 20"); a("s_add_u32 s65, s65, s64"); a("s_and_b32 s66, s2, 63"); a("s_lshl_b32 s66, s66, 6")
    a("s_waitcnt lgkmcnt(0)")
    if tlb == 3:
        a(f"s_cmp_lg_u32 s{sW}, 0"); a("s_cbranch_scc1 L_ntlb")
        a(f"s_load_dword s70, s[{sWQ}:{sWQ+1}], s65"); a(f"s_load_dword s71, s[{sW1}:{sW1+1}], s64"); a(f"s_load_dword s72, s[{sX}:{sX+1}], s66")
        a.label("L_ntlb")
    if early_bar:
        a("s_barrier")
        a(f"s_cmp_lt_u32 s{sWAVE}, 4"); a("s_cbranch_scc1 L_H")
        a(f"s_cmp_ge_u32 s{sWAVE}, 8"); a("s_cbranch_scc1 L_V")
    slab_srd(sK)
    stamp(1)
    for tt in range(32):
        if tt == kpre and not early_bar:
            if lay2: a("s_branch L_K1"); section("K1"); a.label("L_K1")
            a("s_barrier")
            if stamps and diag: a(f"s_waitcnt vmcnt({kpre-1})"); stamp(3)
        B, t8 = tt >> 3, tt & 7
        t = 4 * (2*B + (t8 & 1)) + (t8 >> 1)
        a(f"buffer_load_dwordx4 {vr(KD+4*t,4)}, v1, s[{sSRD}:{sSRD+3}], s{sO} offen offset:{toff(tt) & 4095} nt")
        if tt < 31: step(tt)
        if pk and pk <= tt < 31: a(f"s_waitcnt vmcnt({pk})")
    if kgate: lds_signal(F_KISS)
    stamp(2)
    if layout: a("s_branch L_K2"); section("K2"); a.label("L_K2")
    if stamps: srd(sSRDW, sWS, WS_SIZE)
    a(f"s_mov_b32 s{sM1}, 0xaaaaaaaa"); a(f"s_mov_b32 s{sM1+1}, 0xaaaaaaaa")
    a(f"s_mov_b32 s{sM2}, 0xcccccccc"); a(f"s_mov_b32 s{sM2+1}, 0xcccccccc")
    a("v_lshlrev_b32 v37, 8, v2"); a("v_lshl_add_u32 v37, v3, 2, v37")
    a(f"s_lshl_b32 s{sT1}, s{sW}, 10"); a(f"v_add_u32 v37, s{sT1}, v37")
    a("v_lshlrev_b32 v38, 3, v2"); a(f"s_lshl_b32 s{sT1}, s{sW}, 5"); a(f"v_add_u32 v38, s{sT1}, v38")
    a(f"s_lshl_b32 s{sT1}, s{sW}, 2"); a(f"v_mov_b32 v39, s{sT1}")
    lds_wait(F_Q, 4, sleep=2)
    a(f"ds_read_b128 v[8:11], v36 offset:{L_Q}")
    a("s_waitcnt vmcnt(0) lgkmcnt(0)")
    stamp(4)
    QR, T0, Y = 8, 12, 28
    def Dreg(u): return T0 if u == 0 else KD + 16 * (u - 1)
    def mf(u):
        for jj in range(4):
            a(f"v_mfma_f32_16x16x32_bf16 {vr(Dreg(u)+4*jj,4)}, {vr(QR,4)}, {vr(KD+16*u+4*jj,4)}, 0")
    ZR = [32, 33, 34, 35, 12, 13, 14, 15]
    mf(0)
    for u in range(8):
        if u < 7: mf(u + 1)
        D = Dreg(u)
        for s in range(4):
            for jj in range(4):
                q = f"quad_perm:[{s},{s},{s},{s}] {DPPM}"
                if s == 0: a(f"v_mov_b32_dpp v{Y+jj}, v{D+4*jj} {q}")
                else: a(f"v_add_f32_dpp v{Y+jj}, v{D+4*jj+s}, v{Y+jj} {q}")
        a(f"v_cndmask_b32 v{Y}, v{Y}, v{Y+1}, s[{sM1}:{sM1+1}]")
        a(f"v_cndmask_b32 v{Y+2}, v{Y+2}, v{Y+3}, s[{sM1}:{sM1+1}]")
        a(f"v_cndmask_b32 v{ZR[u]}, v{Y}, v{Y+2}, s[{sM2}:{sM2+1}]")
    a(f"s_mov_b32 s{sT1}, 0x3db504f3")
    for B in range(4): a(f"v_cvt_pk_bf16_f32 v{Y+B}, v{ZR[2*B]}, v{ZR[2*B+1]}")
    for B in range(4):
        z0, z1 = ZR[2*B], ZR[2*B+1]
        a(f"v_lshlrev_b32 v{z0}, 16, v{Y+B}"); a(f"v_and_b32 v{z1}, 0xffff0000, v{Y+B}")
        a(f"v_mul_f32 v{z0}, s{sT1}, v{z0}"); a(f"v_mul_f32 v{z1}, s{sT1}, v{z1}")
        a(f"v_cvt_pk_bf16_f32 v{Y+B}, v{z0}, v{z1}")
    for B in range(4):
        a(f"v_lshlrev_b32 v{ZR[2*B]}, 16, v{Y+B}"); a(f"v_and_b32 v{ZR[2*B+1]}, 0xffff0000, v{Y+B}")
    MX, SM = 16, 17
    a(f"v_max3_f32 v{MX}, v{ZR[0]}, v{ZR[1]}, v{ZR[2]}"); a(f"v_max3_f32 v{MX}, v{MX}, v{ZR[3]}, v{ZR[4]}")
    a(f"v_max3_f32 v{MX}, v{MX}, v{ZR[5]}, v{ZR[6]}"); a(f"v_max_f32 v{MX}, v{MX}, v{ZR[7]}")
    allreduce("v_max_f32", MX, 18, ['r8', 'r4', 'r2', 'r1'])
    a(f"s_mov_b32 s{sT1}, 0x3fb8aa3b")
    for z in ZR: a(f"v_sub_f32 v{z}, v{z}, v{MX}")
    for z in ZR: a(f"v_mul_f32 v{z}, s{sT1}, v{z}")
    for z in ZR: a(f"v_exp_f32 v{z}, v{z}")
    for B in range(4): a(f"v_cvt_pk_bf16_f32 v{Y+B}, v{ZR[2*B]}, v{ZR[2*B+1]}")
    for B in range(4): a(f"ds_write_b32 v37, v{Y+B} offset:{L_P + 64*B}")
    lds_signal(F_P, addr=39)
    a(f"v_add_f32 v{SM}, v{ZR[0]}, v{ZR[1]}")
    for z in ZR[2:]: a(f"v_add_f32 v{SM}, v{SM}, v{z}")
    allreduce("v_add_f32", SM, 18, ['r8', 'r4', 'r2', 'r1'])
    a(f"ds_write_b64 v38, v[{MX}:{SM}] offset:{L_ST}")
    lds_signal(F_STAT)
    stamp(5)
    finish_wave()

    if layout: section("V")
    a.label("L_V")
    VD, AV, BT, ACC = 40, 8, 24, 32
    a("v_lshlrev_b32 v4, 4, v3"); goff(1, 4, 4)
    if not early_bar:
        a("s_waitcnt lgkmcnt(0)")
        if tlb in (1, 2):
            a(f"s_load_dword s64, s[{sK}:{sK+1}], s{sO}"); a(f"s_load_dword s65, s[{sV}:{sV+1}], s{sO}")
            if tlb >= 2:
                a(f"s_lshl_b32 s{sT1}, s{sKVH}, 19")
                a(f"s_load_dword s66, s[{sWO}:{sWO+1}], s{sT1}"); a(f"s_load_dword s67, s[{sW2}:{sW2+1}], 0")
                a(f"s_load_dword s68, s[{sOUT}:{sOUT+1}], 0"); a(f"s_load_dword s69, s[{sW1}:{sW1+1}], 0")
                a(f"s_lshl_b32 s{sT1}, s{sJ}, 17"); a(f"s_load_dword s63, s[{sWQ}:{sWQ+1}], s{sT1}")
        a("s_barrier")
    slab_srd(sV)
    if "v" in touch:
        a(f"s_cmp_lg_u32 s{sW}, 3"); a("s_cbranch_scc1 L_nvt")
        lds_wait(F_P1, 1, sleep=2)
        a("s_mov_b64 exec, 1"); a(f"buffer_load_dword v8, v{vZ}, s[{sSRD}:{sSRD+3}], s{sO} offen nt"); a("s_mov_b64 exec, -1")
        a.label("L_nvt")
    def vloads(pace, last):
        for tt in range(32):
            a(f"buffer_load_dwordx4 {vr(VD+4*tt,4)}, v1, s[{sSRD}:{sSRD+3}], s{sO} offen offset:{toff(tt) & 4095} nt")
            if tt < 31: step(tt)
            if pace and pace <= tt < 31: a(f"s_waitcnt vmcnt({pace})")
            if wo_sig is not None and tt == wo_sig:
                if last: lds_signal(F_WO)
                elif not gate_v:
                    a(f"s_cmp_lg_u32 s{sW}, 3"); a("s_cbranch_scc1 L_nowo"); lds_signal(F_WO); a.label("L_nowo")
    if gate_v:
        a(f"s_cmp_lg_u32 s{sW}, 3"); a("s_cbranch_scc1 L_Vgo")
        lds_wait(F_VISS, 3, sleep=1)
        stamp(1)
        vloads(pl, True)
        a("s_branch L_Vissued")
        a.label("L_Vgo")
    if kgate: lds_wait(F_KISS, 4, sleep=1)
    stamp(1)
    vloads(pv, False)
    a.label("L_Vissued")
    lds_signal(F_VISS)
    stamp(2)
    set_sel(); set_masks()
    srd(sSRDW, sWS, WS_SIZE)
    a("v_and_b32 v3, 3, v0"); a("v_lshlrev_b32 v3, 8, v3"); a("v_lshl_add_u32 v3, v2, 4, v3")
    a(f"s_lshl_b32 s{sT1}, s{sW}, 10"); a(f"s_add_u32 s{sT1}, s{sT1}, {L_P}"); a(f"v_add_u32 v1, s{sT1}, v3")
    a(f"v_mov_b32 v{BT}, {L_ZERO}")
    for g in range(4): a(f"v_cndmask_b32 v{2+g}, v{BT}, v1, s[{sM+2*g}:{sM+2*g+1}]")
    a(f"s_lshl_b32 s{sT1}, s{sW}, 2"); a(f"v_mov_b32 v{BT}, s{sT1}")
    lds_wait(F_P, 1, sleep=2, vt=BT+1, addr=BT)
    stamp(3)
    def vblock(B):
        for g in range(4): a(f"ds_read_b128 {vr(AV+4*g,4)}, v{2+g} offset:{64*B}")
        a(f"s_waitcnt vmcnt({24-8*B}) lgkmcnt(0)")
        block(VD + 32*B, AV, BT, ACC, 'B', first=(B == 0))
    for B in range(3): vblock(B)
    a(f"s_cmp_eq_u32 s{sW}, 3"); a("s_cbranch_scc1 L_Vlast")
    vblock(3)
    a(f"s_lshl_b32 s{sT1}, s{sW}, 11"); a("v_lshlrev_b32 v1, 4, v0"); a(f"v_add_u32 v1, s{sT1}, v1")
    a(f"ds_write_b128 v1, {vr(ACC,4)} offset:{L_OS}"); a(f"ds_write_b128 v1, {vr(ACC+4,4)} offset:{L_OS+1024}")
    lds_signal(F_OCNT)
    stamp(5)
    finish_wave()
    a.label("L_Vlast")
    a("s_setprio 3")
    OSR, FWR, TOT = VD, VD + 24, VD + 40
    a("v_lshlrev_b32 v95, 4, v0")
    a(f"s_lshl_b32 s{sT1}, s{sKVH}, 5"); a(f"s_add_u32 s{sT1}, s{sT1}, s{sJ}"); a(f"s_lshl_b32 s{sT1}, s{sT1}, 10")
    a(f"s_add_u32 s{sT5}, s{sT1}, {OP}")
    if fast: read_mix(94)
    lds_wait(F_OCNT, 3, sleep=1, vt=94)
    lds_wait(F_FW, 1, sleep=1, vt=94)
    for w in range(3):
        for ac in range(2): a(f"ds_read_b128 {vr(OSR+8*w+4*ac,4)}, v95 offset:{L_OS+2048*w+1024*ac}")
    for w in range(4): a(f"ds_read_b128 {vr(FWR+4*w,4)}, v{vZ} offset:{L_FW+16*w}")
    a("s_waitcnt lgkmcnt(0)")
    for ac in range(2):
        for h in range(4): a(f"v_mul_f32 v{TOT+4*ac+h}, v{FWR+h}, v{OSR+4*ac+h}")
    for w in range(1, 3):
        for ac in range(2):
            for h in range(4): a(f"v_fmac_f32 v{TOT+4*ac+h}, v{FWR+4*w+h}, v{OSR+8*w+4*ac+h}")
    for g in range(4): a(f"ds_read_b128 {vr(AV+4*g,4)}, v{2+g} offset:{64*3}")
    if prog:
        PB, D3 = VD + 56, VD + 96
        for m in range(4):
            a(f"s_waitcnt vmcnt({6-2*m})" + (" lgkmcnt(0)" if m == 3 else ""))
            if m == 3: stamp(4)
            for e in range(8):
                a(f"v_perm_b32 v{PB+4*e+m}, v{D3+4*(2*m+1)+(e>>1)}, v{D3+4*(2*m)+(e>>1)}, s{sSELHI if e & 1 else sSELLO}")
                if m == 3 and e >= 2:
                    ac, g = emap(e - 2, 'B')
                    a(f"v_mfma_f32_16x16x32_bf16 {vr(ACC+4*ac,4)}, {vr(AV+4*g,4)}, {vr(PB+4*(e-2),4)}, {vr(ACC+4*ac,4)}")
        for e in (6, 7):
            ac, g = emap(e, 'B')
            a(f"v_mfma_f32_16x16x32_bf16 {vr(ACC+4*ac,4)}, {vr(AV+4*g,4)}, {vr(PB+4*e,4)}, {vr(ACC+4*ac,4)}")
    else:
        a(f"s_waitcnt vmcnt(0) lgkmcnt(0)")
        stamp(4)
        block(VD + 96, AV, BT, ACC, 'B')
    for ac in range(2):
        for h in range(4): a(f"v_fmac_f32 v{TOT+4*ac+h}, v{FWR+12+h}, v{ACC+4*ac+h}")
    for h in range(4): a(f"v_cvt_pk_bf16_f32 v{BT+h}, v{TOT+h}, v{TOT+4+h}")
    transpose4(BT)
    for h in range(4): a(f"v_min_u32 v{BT+h}, 0xfffffffe, v{BT+h}")
    group_store(f"buffer_store_dwordx4 {vr(BT,4)}, v95, {WSRD}, s{sT5} offen")
    stamp(5)
    finish_wave()

    if layout: section("H")
    a.label("L_H")
    dstamp(3)
    a("s_setprio 2")
    AV, BT, ACC, WD, XS, U, XA = 8, 24, 32, 40, 104, 120, 136
    def xn_addr(s_k0bytes):
        a("v_and_b32 v4, 3, v0"); a("v_lshlrev_b32 v4, 10, v4"); a("v_lshl_add_u32 v4, v2, 5, v4")
        a("v_bfe_u32 v5, v0, 2, 1"); a("v_lshl_add_u32 v4, v5, 4, v4"); a(f"s_add_u32 s{sT0}, s{s_k0bytes}, {L_XN}"); a(f"v_add_u32 v4, s{sT0}, v4")
        a(f"v_mov_b32 v5, {L_ZERO}"); a("s_mov_b32 vcc_lo, 0x00ff00ff"); a("s_mov_b32 vcc_hi, 0x00ff00ff")
        a("v_cndmask_b32 v160, v5, v4, vcc"); a("v_cndmask_b32 v161, v4, v5, vcc")
    def hconst():
        set_sel(); set_masks()
        a(f"s_lshr_b32 s{sT0}, s{sJ}, 2"); a(f"s_lshl_b32 s{sHF}, s{sKVH}, 3"); a(f"s_add_u32 s{sHF}, s{sHF}, s{sT0}")
        a(f"s_and_b32 s{sCQ}, s{sJ}, 3")
        a(f"s_getreg_b32 s{sXCC}, hwreg(HW_REG_XCC_ID, 0, 4)")
    if not lay2: hconst()
    a(f"s_cmp_ge_u32 s{sWAVE}, 2"); a("s_cbranch_scc1 L_H23")
    a("v_lshrrev_b32 v4, 3, v0"); a("v_and_b32 v5, 7, v0")
    a(f"s_cmp_eq_u32 s{sWAVE}, 1"); a("s_cbranch_scc1 L_H1a")
    def ln_loads(nblk, s_k0bytes):
        srd(sSRD2, sX, 4096)
        for i in range(4): a(f"buffer_load_dwordx4 {vr(XS+4*i,4)}, v160, s[{sSRD2}:{sSRD2+3}], 0 offen offset:{256*i}" + NT("x"))
        for B in range(nblk): a(f"buffer_load_dwordx4 {vr(XA+4*B,4)}, v161, s[{sSRD2}:{sSRD2+3}], s{s_k0bytes} offen offset:{128*B}")
    MEAN, RS = 162, 164
    def ln_stats():
        for i in range(16):
            a(f"v_lshlrev_b32 v{U+2*i}, 16, v{WD+i}"); a(f"v_and_b32 v{U+2*i+1}, 0xffff0000, v{WD+i}")
        for i in range(8): a(f"v_pk_add_f32 {vr(XS+2*i,2)}, {vr(U+4*i,2)}, {vr(U+4*i+2,2)}")
        for i in range(4): a(f"v_pk_add_f32 {vr(XS+2*i,2)}, {vr(XS+2*i,2)}, {vr(XS+8+2*i,2)}")
        for i in range(2): a(f"v_pk_add_f32 {vr(XS+2*i,2)}, {vr(XS+2*i,2)}, {vr(XS+4+2*i,2)}")
        a(f"v_pk_add_f32 {vr(XS,2)}, {vr(XS,2)}, {vr(XS+2,2)}")
        a(f"v_add_f32 v{MEAN}, v{XS}, v{XS+1}")
        allreduce("v_add_f32", MEAN, XS, ['r8', 'r4', 'r2', 'r1'])
        a(f"v_mul_f32 v{MEAN}, 0xbb000000, v{MEAN}")
        a(f"v_mov_b32 v{MEAN+1}, v{MEAN}")
        for i in range(16): a(f"v_pk_add_f32 {vr(U+2*i,2)}, {vr(U+2*i,2)}, {vr(MEAN,2)}")
        for i in range(4): a(f"v_pk_mul_f32 {vr(XS+2*i,2)}, {vr(U+2*i,2)}, {vr(U+2*i,2)}")
        for i in range(4, 16): a(f"v_pk_fma_f32 {vr(XS+2*(i&3),2)}, {vr(U+2*i,2)}, {vr(U+2*i,2)}, {vr(XS+2*(i&3),2)}")
        for i in range(2): a(f"v_pk_add_f32 {vr(XS+2*i,2)}, {vr(XS+2*i,2)}, {vr(XS+4+2*i,2)}")
        a(f"v_pk_add_f32 {vr(XS,2)}, {vr(XS,2)}, {vr(XS+2,2)}")
        a(f"v_add_f32 v{RS}, v{XS}, v{XS+1}")
        allreduce("v_add_f32", RS, XS, ['r8', 'r4', 'r2', 'r1'])
        a(f"v_mul_f32 v{RS}, 0x3b000000, v{RS}")
        rnd(RS)
        a(f"v_add_f32 v{RS}, 0x3727c5ac, v{RS}")
        rnd(RS)
        a(f"v_sqrt_f32 v{RS}, v{RS}")
        rnd(RS)
        a(f"v_rcp_f32 v{RS}, v{RS}")
        rnd(MEAN)
        a(f"v_mov_b32 v{MEAN+1}, v{MEAN}"); a(f"v_mov_b32 v{RS+1}, v{RS}")
    def ln_apply(src):
        for i in range(4):
            a(f"v_lshlrev_b32 v{U+2*i}, 16, v{src+i}"); a(f"v_and_b32 v{U+2*i+1}, 0xffff0000, v{src+i}")
        for i in range(4): a(f"v_pk_add_f32 {vr(U+2*i,2)}, {vr(U+2*i,2)}, {vr(MEAN,2)}")
        for i in range(4): a(f"v_cvt_pk_bf16_f32 v{src+i}, v{U+2*i}, v{U+2*i+1}")
        for i in range(4):
            a(f"v_lshlrev_b32 v{U+2*i}, 16, v{src+i}"); a(f"v_and_b32 v{U+2*i+1}, 0xffff0000, v{src+i}")
        for i in range(4): a(f"v_pk_mul_f32 {vr(U+2*i,2)}, {vr(U+2*i,2)}, {vr(RS,2)}")
        for i in range(4): a(f"v_cvt_pk_bf16_f32 v{src+i}, v{U+2*i}, v{U+2*i+1}")

    A16 = 8 + 16
    a("v_lshlrev_b32 v1, 16, v4"); a("v_lshl_add_u32 v1, v5, 4, v1")
    a(f"s_lshl_b32 s{sT1}, s{sB}, 8")
    a(f"s_lshl_b32 s{sT2}, s{sB}, 20"); a(f"s_lshl_b32 s{sT3}, s{sKVH}, 10"); a(f"s_add_u32 s{sT2}, s{sT2}, s{sT3}")
    a(f"s_lshl_b32 s{sT3}, s{sS}, 7"); a(f"s_add_u32 s{sT2}, s{sT2}, s{sT3}")
    a("s_waitcnt lgkmcnt(0)")
    dstamp(4)
    epoch_load()
    dstamp(6)
    srd(sSRD, sWQ, 0x400000)
    for B in range(2):
        for t in range(8):
            a(f"buffer_load_dwordx4 {vr(WD+32*B+4*t,4)}, v1, s[{sSRD}:{sSRD+3}], s{sT2} offen nt")
            if not (B == 1 and t == 7): a(f"s_add_u32 s{sT2}, s{sT2}, {8192 if t < 7 else 8192*57}")
    bar()
    stamp(1)
    if layout: a("s_branch L_H0c"); section("H0c"); a.label("L_H0c")
    if lay2: hconst()
    srd(sSRDW, sWS, WS_SIZE)
    xn_addr(sT1)
    make_tag()
    a("v_lshrrev_b32 v4, 5, v0"); a("v_and_b32 v5, 31, v0")
    a("v_lshlrev_b32 v166, 14, v4"); a("v_lshl_add_u32 v166, v5, 4, v166")
    a("v_mul_u32_u24 v165, 12, v5"); a("v_lshl_add_u32 v165, v4, 8, v165")
    a(f"v_cmp_eq_u32 s[{sO}:{sO+1}], 21, v5")
    a(f"s_lshl_b32 s{sT4}, s{sKVH}, 16"); a(f"s_lshr_b32 s{sT3}, s{sS}, 1"); a(f"s_lshl_b32 s{sT3}, s{sT3}, 12"); a(f"s_add_u32 s{sT4}, s{sT4}, s{sT3}")
    a(f"s_lshl_b32 s{sT3}, s{sB}, 10"); a(f"s_add_u32 s{sT4}, s{sT4}, s{sT3}"); a(f"s_and_b32 s{sT3}, s{sS}, 1"); a(f"s_lshl_b32 s{sT3}, s{sT3}, 9")
    a(f"s_add_u32 s{sT4}, s{sT4}, s{sT3}"); a(f"s_add_u32 s{sT4}, s{sT4}, {QP}"); a(f"s_add_u32 s{sT5}, s{sT4}, {2*16384}")
    for i in range(2): a(f"v_mov_b32 v{U+4*i+3}, s{sTAG}")
    a(f"v_mov_b32 v{U+8}, s{sXCC}")
    a(f"v_add_u32 v167, {L_OS}, v165")
    lds_wait(F_XN, 1, sleep=1)
    stamp(5)
    for B in range(2):
        for v in range(2): a(f"ds_read_b128 {vr(XA+8*B+4*v,4)}, v{160+v} offset:{128*B}")
    a("s_waitcnt vmcnt(8) lgkmcnt(0)")
    block8(WD, XA, 16, A16, first=True)
    if not lateclr: lds_wait(F_CLR, 1, sleep=1)
    a("s_waitcnt vmcnt(0)")
    block8(WD + 32, XA + 8, 16, A16)
    dense8(A16)
    dense_to_lds(A16, L_OS)
    for i in range(2):
        a(f"ds_read2_b32 {vr(U+4*i,2)}, v167 offset0:{128*i} offset1:{128*i+1}")
        a(f"ds_read_b32 v{U+4*i+2}, v165 offset:{L_OS+512*i+8}")
    a("s_waitcnt lgkmcnt(0)")
    for i in range(2): a(f"v_cndmask_b32 v{U+4*i+1}, v{U+4*i+1}, v{U+8}, s[{sO}:{sO+1}]")
    a("s_mov_b32 exec_lo, 0x00ffffff"); a("s_mov_b32 exec_hi, 0x00ffffff")
    a(f"buffer_store_dwordx4 {vr(U,4)}, v166, {WSRD}, s{sT4} offen sc1")
    a(f"buffer_store_dwordx4 {vr(U+4,4)}, v166, {WSRD}, s{sT5} offen sc1")
    a("s_mov_b64 exec, -1")
    stamp(2)
    if w1late == 1: lds_signal(F_P0)
    a("s_waitcnt vmcnt(0)")
    lds_signal(F_P1)
    a("s_branch L_qgather")

    if layout: section("H")
    a.label("L_H1a")
    a(f"s_mov_b32 s{sT0}, {8*3584}"); a(f"v_mul_lo_u32 v1, v4, s{sT0}"); a("v_lshl_add_u32 v1, v5, 4, v1")
    a("v_cmp_eq_u32 vcc, 7, v5"); a("v_mov_b32 v4, 0x40000000"); a("v_cndmask_b32 v1, v1, v4, vcc")
    a(f"s_lshl_b32 s{sT1}, s{sS}, 7")
    a(f"s_lshl_b32 s{sT0}, s{sKVH}, 2"); a(f"s_add_u32 s{sT0}, s{sT0}, s{sB}")
    a(f"s_mul_i32 s{sT2}, s{sS}, {64*3584}"); a(f"s_mul_i32 s{sT3}, s{sT0}, 112"); a(f"s_add_u32 s{sT2}, s{sT2}, s{sT3}")
    a("s_waitcnt lgkmcnt(0)")
    epoch_load()
    def w1_loads():
        for t in range(8):
            a(f"buffer_load_dwordx4 {vr(WD+4*t,4)}, v1, s[{sSRD}:{sSRD+3}], s{sT2} offen nt")
            if t < 7: a(f"s_add_u32 s{sT2}, s{sT2}, 3584")
    srd(sSRD, sW1, 512 * 3584)
    w1_loads()
    bar()
    stamp(1)
    a("s_branch L_H1c"); section("H1c"); a.label("L_H1c")
    hconst()
    srd(sSRDW, sWS, WS_SIZE)
    xn_addr(sT1)
    make_tag()
    a(f"s_lshl_b32 s{sO}, s{sKVH}, 5"); a(f"s_add_u32 s{sO}, s{sO}, s{sJ}"); a(f"s_lshl_b32 s{sO}, s{sO}, 10"); a(f"s_add_u32 s{sO}, s{sO}, {HP}")
    a("v_lshlrev_b32 v166, 4, v0")
    lds_wait(F_XN, 1, sleep=1)
    for v in range(2): a(f"ds_read_b128 {vr(XA+4*v,4)}, v{160+v}")
    a("s_waitcnt vmcnt(0) lgkmcnt(0)")
    block8(WD, XA, 16, A16, first=True)
    dense8(A16)
    dense_to_lds(A16, L_OS + 2048)
    a(f"ds_read_b128 {vr(XA,4)}, v166 offset:{L_OS+2048}")
    a("s_waitcnt lgkmcnt(0)")
    bytetag(XA, 4)
    if not late_hp: a(f"buffer_store_dwordx4 {vr(XA,4)}, v166, {WSRD}, s{sO} offen sc1")
    stamp(2)
    a("s_branch L_qwait")

    if layout: section("H")
    a.label("L_H23")
    a("s_waitcnt lgkmcnt(0)")
    epoch_load()
    a(f"s_cmp_eq_u32 s{sWAVE}, 3"); a("s_cbranch_scc1 L_H3a")
    srd(sSRDW, sWS, WS_SIZE)
    for i in range(4): a(f"v_mov_b32 v{BT+i}, -1")
    a("v_lshlrev_b32 v1, 4, v0")
    a(f"s_lshl_b32 s{sT1}, s{sKVH}, 5"); a(f"s_add_u32 s{sT1}, s{sT1}, s{sJ}")
    a(f"s_lshl_b32 s{sT2}, s{sT1}, 10"); a(f"s_add_u32 s{sT2}, s{sT2}, {OP}")
    if not lateclr: a(f"buffer_store_dwordx4 {vr(BT,4)}, v1, {WSRD}, s{sT2} offen sc1" + NT("clr"))
    if warm:
        a(f"s_cmp_ge_u32 s{sJ}, (L_exit - L_H3c) / 1024"); a("s_cbranch_scc1 L_nowarm")
        a(f"s_getpc_b64 s[{sT0}:{sT1}]")
        a.label("L_pc")
        a(f"s_add_u32 s{sT0}, s{sT0}, L_exit - L_pc - 1024"); a(f"s_addc_u32 s{sT1}, s{sT1}, 0")
        a(f"s_lshl_b32 s{sT2}, s{sJ}, 10"); a(f"s_sub_u32 s{sT0}, s{sT0}, s{sT2}"); a(f"s_subb_u32 s{sT1}, s{sT1}, 0")
        a("v_lshlrev_b32 v1, 4, v0")
        a(f"global_load_dwordx4 v[8:11], v1, s[{sT0}:{sT1}]")
        a.label("L_nowarm")
    if combine:
        for i in range(2): a(f"ds_write_b128 v1, {vr(BT,4)} offset:{L_X+1024*i}")
    bar()
    if not lateclr:
        a("s_waitcnt vmcnt(0)")
        lds_signal(F_CLR)
    a("s_branch L_H23b")
    a.label("L_H3a")
    a("v_lshlrev_b32 v160, 10, v2"); a("v_lshl_add_u32 v160, v3, 4, v160")
    srd(sSRD2, sX, 4096)
    for i in range(4): a(f"buffer_load_dwordx4 {vr(WD+4*i,4)}, v160, s[{sSRD2}:{sSRD2+3}], 0 offen offset:{256*i}")
    bar()
    a("s_branch L_H3c"); section("H3c"); a.label("L_H3c")
    srd(sSRDW, sWS, WS_SIZE)
    a("s_waitcnt vmcnt(0)")
    ln_stats()
    for i in range(4):
        ln_apply(WD + 4*i)
        a(f"ds_write_b128 v160, {vr(WD+4*i,4)} offset:{L_XN+256*i}")
    lds_signal(F_XN)
    a.label("L_H23b")
    if lay2: hconst()
    stamp(1)
    make_tag()
    if layout: a("s_branch L_qwait"); section("rest")
    a.label("L_qwait")
    lds_wait(F_P1, 1, sleep=2)
    a.label("L_qgather")
    stamp(3)
    a("v_lshlrev_b32 v1, 4, v0")
    a(f"s_lshl_b32 s{sT1}, s{sKVH}, 2"); a(f"s_add_u32 s{sT1}, s{sT1}, s{sB}"); a(f"s_lshl_b32 s{sT1}, s{sT1}, 2")
    a(f"s_add_u32 s{sT1}, s{sT1}, s{sWAVE}"); a(f"s_lshl_b32 s{sT1}, s{sT1}, 12"); a(f"s_add_u32 s{sT1}, s{sT1}, {QP}")
    a("v_and_b32 v5, 31, v0"); a("v_mul_u32_u24 v33, 6, v5"); a("v_lshrrev_b32 v5, 5, v0"); a("v_lshl_add_u32 v33, v5, 7, v33")
    a(f"s_lshl_b32 s{sT3}, s{sWAVE}, 8"); a(f"v_add_u32 v33, s{sT3}, v33")
    a("s_mov_b32 exec_lo, 0x003fffff"); a("s_mov_b32 exec_hi, 0x003fffff")
    L = lab("poll"); a.label(L)
    for u in range(4): a(f"buffer_load_dwordx4 {vr(WD+4*u,4)}, v1, {WSRD}, s{sT1} offen offset:{1024*u} sc1")
    a("s_waitcnt vmcnt(0)")
    for u in range(4): a(f"v_xor_b32 v{WD+4*u+3}, s{sTAG}, v{WD+4*u+3}")
    a(f"v_or3_b32 v5, v{WD+3}, v{WD+7}, v{WD+11}"); a(f"v_or_b32 v5, v5, v{WD+15}")
    a("v_cmp_ne_u32 vcc, 0, v5")
    retry(L, sleep=2, masked=True)
    if fast:
        a("s_mov_b32 exec_lo, 0x00200000"); a("s_mov_b32 exec_hi, 0x00200000")
        for u in range(4): a(f"v_xor_b32 v{BT+u}, s{sXCC}, v{WD+4*u+1}")
        a(f"v_or3_b32 v5, v{BT}, v{BT+1}, v{BT+2}"); a(f"v_or_b32 v5, v5, v{BT+3}")
        a("v_cmp_ne_u32 vcc, 0, v5"); a("s_cbranch_vccz L_uniform")
        lds_signal(F_MIX)
        a.label("L_uniform")
    a("s_mov_b32 exec_lo, 0x003fffff"); a("s_mov_b32 exec_hi, 0x003fffff")
    for k in range(3):
        a(f"v_add_f32 v{WD+k}, v{WD+k}, v{WD+4+k}"); a(f"v_add_f32 v{WD+8+k}, v{WD+8+k}, v{WD+12+k}")
    for k in range(3): a(f"v_add_f32 v{WD+k}, v{WD+k}, v{WD+8+k}")
    a(f"v_cvt_pk_bf16_f32 v{WD}, v{WD}, v{WD+1}"); a(f"v_cvt_pk_bf16_f32 v{WD+2}, v{WD+2}, v{WD+2}")
    a(f"ds_write_b16 v33, v{WD} offset:{L_Q}")
    a("s_mov_b32 exec_lo, 0x001fffff"); a("s_mov_b32 exec_hi, 0x001fffff")
    a(f"ds_write_b16_d16_hi v33, v{WD} offset:{L_Q+2}"); a(f"ds_write_b16 v33, v{WD+2} offset:{L_Q+4}")
    lds_signal(F_Q)
    stamp(4)
    a(f"s_cmp_eq_u32 s{sWAVE}, 2"); a("s_cbranch_scc1 L_H2b")
    a(f"s_cmp_eq_u32 s{sWAVE}, 3"); a("s_cbranch_scc1 L_H3b")
    a("v_lshlrev_b32 v1, 13, v2"); a("v_lshl_add_u32 v1, v3, 4, v1")
    a(f"s_cmp_eq_u32 s{sWAVE}, 1"); a("s_cbranch_scc1 L_H1b")
    a("s_branch L_proj")
    a.label("L_H1b")
    if late_hp:
        lds_wait(F_Q, 4, sleep=2)
        read_mix(5)
        a("v_lshlrev_b32 v166, 4, v0")
        group_store(f"buffer_store_dwordx4 {vr(XA,4)}, v166, {WSRD}, s{sO} offen")
    a.label("L_proj")
    assert combine
    BW, G, SU, AA = 104, 72, 80, 96
    srd(sSRD, sWO, 0x400000)
    a(f"s_lshl_b32 s{sDB}, s{sHF}, 1"); a(f"s_add_u32 s{sDB}, s{sDB}, s{sWAVE}")
    a(f"s_lshl_b32 s{sO}, s{sDB}, 15"); a(f"s_lshl_b32 s{sT2}, s{sCQ}, 8"); a(f"s_add_u32 s{sO}, s{sO}, s{sT2}"); a(f"s_add_u32 s{sO+1}, s{sO}, 4096")
    a("v_bfe_u32 v4, v0, 2, 2"); a("v_and_b32 v5, 3, v0")
    a("v_lshlrev_b32 v137, 10, v4"); a("v_lshl_add_u32 v137, v2, 7, v137")
    a(f"s_lshl_b32 s{sO+2}, s{sKVH}, 12"); a(f"s_bfe_u32 s{sT2}, s{sHF}, 0x10002"); a(f"s_lshl_b32 s{sT2}, s{sT2}, 4")
    a(f"s_add_u32 s{sO+2}, s{sO+2}, s{sT2}"); a(f"s_add_u32 s{sO+2}, s{sO+2}, {ST}")
    a("v_lshlrev_b32 v100, 13, v4"); a("v_lshl_add_u32 v100, v2, 10, v100"); a("v_lshl_add_u32 v100, v5, 4, v100")
    a(f"s_lshl_b32 s{sT3}, s{sKVH}, 15"); a(f"s_and_b32 s{sT4}, s{sDB}, 15"); a(f"s_lshl_b32 s{sT4}, s{sT4}, 6")
    a(f"s_add_u32 s{sT3}, s{sT3}, s{sT4}"); a(f"s_add_u32 s{sT3}, s{sT3}, {OP}"); a(f"s_add_u32 s{sT4}, s{sT3}, 4096")
    a(f"s_lshl_b32 s{sT1}, s{sWAVE}, 8"); a(f"s_add_u32 s{sT1}, s{sT1}, {L_AO}")
    a("v_lshlrev_b32 v101, 6, v4"); a("v_lshl_add_u32 v101, v5, 4, v101"); a("v_lshl_add_u32 v101, v2, 2, v101"); a(f"v_add_u32 v101, s{sT1}, v101")
    a("v_lshlrev_b32 v5, 6, v5"); a("v_lshl_add_u32 v5, v2, 4, v5"); a(f"v_add_u32 v5, s{sT1}, v5"); a(f"v_mov_b32 v4, {L_ZERO}")
    for g in range(4): a(f"v_cndmask_b32 v{AA+g}, v4, v5, s[{sM+2*g}:{sM+2*g+1}]")
    a("v_lshlrev_b32 v138, 4, v0")
    if numa:
        a(f"s_lshl_b32 s{sT2}, s{sCQ}, 18"); a(f"s_lshr_b32 s{sT1}, s{sDB}, 3"); a(f"s_lshl_b32 s{sT1}, s{sT1}, 14"); a(f"s_add_u32 s{sT2}, s{sT2}, s{sT1}")
        a(f"s_and_b32 s{sT1}, s{sDB}, 7"); a(f"s_lshl_b32 s{sT1}, s{sT1}, 10")
    else:
        a(f"s_lshl_b32 s{sT2}, s{sCQ}, 17"); a(f"s_lshl_b32 s{sT1}, s{sDB}, 10")
    a(f"s_add_u32 s{sT5}, s{sT1}, s{sT2}"); a(f"s_add_u32 s{sT5}, s{sT5}, {FP}"); a(f"s_add_u32 s{sO+3}, s{sT5}, 8192")
    a(f"s_lshl_b32 s{sT1}, s{sWAVE}, 10"); a(f"v_add_u32 v103, s{sT1}, v138"); a(f"v_xor_b32 v136, 1024, v103")
    a(f"v_mov_b32 v102, s{sHI}")
    if "wo" in touch:
        a("s_mov_b64 exec, 1"); a(f"buffer_load_dword v139, v{vZ}, s[{sSRD}:{sSRD+3}], s{sO} offen nt"); a("s_mov_b64 exec, -1")
    lds_wait(F_FW, 1, sleep=4)
    if wo_sig is not None: lds_wait(F_WO, 1, sleep=1)
    a("s_setprio 3")
    for t in range(8):
        a(f"buffer_load_dwordx4 {vr(WD+4*t,4)}, v1, s[{sSRD}:{sSRD+3}], s{sO + (t >> 2)} offen offset:{(t&3)*1024} nt")
    for u in range(2): a(f"buffer_load_dwordx4 {vr(144+4*u,4)}, v137, {WSRD}, s{sO+2} offen offset:{512*u} sc1")
    lds_wait(F_MLP, 1, sleep=1)
    for i in range(4): a(f"v_mov_b32 v{SU+i}, 0")
    a(f"ds_read_b128 {vr(SU+4,4)}, v103 offset:{L_M}")
    a("s_waitcnt lgkmcnt(0)")
    a(f"s_cmp_eq_u32 s{sWAVE}, 1"); a(f"s_cselect_b64 vcc, -1, 0")
    for i in range(4):
        a(f"v_cndmask_b32 v{ACC+i}, v{SU+4+i}, v{SU+i}, vcc"); a(f"v_cndmask_b32 v{ACC+4+i}, v{SU+i}, v{SU+4+i}, vcc")
    for m in range(4):
        a(f"s_waitcnt vmcnt({8-2*m})")
        for e in range(8):
            a(f"v_perm_b32 v{BW+4*e+m}, v{WD+4*(2*m+1)+(e>>1)}, v{WD+4*(2*m)+(e>>1)}, s{sSELHI if e & 1 else sSELLO}")
    a("s_branch L_stchk")
    L = lab("poll"); a.label(L)
    for u in range(2): a(f"buffer_load_dwordx4 {vr(144+4*u,4)}, v137, {WSRD}, s{sO+2} offen offset:{512*u} sc1")
    a.label("L_stchk")
    a("s_waitcnt vmcnt(0)")
    untag(144, 8, 5)
    retry(L, sleep=4, masked=True)
    for u in range(2): a(f"buffer_load_dwordx4 {vr(G+4*u,4)}, v100, {WSRD}, s{sT3+u} offen sc1")
    a(f"s_bitcmp1_b32 s{sHF}, 1"); a("s_cbranch_scc0 L_evenh")
    for u in range(2):
        a(f"v_mov_b32 v{144+4*u}, v{146+4*u}"); a(f"v_mov_b32 v{145+4*u}, v{147+4*u}")
    a.label("L_evenh")
    a("v_max_f32 v146, v144, v148")
    allreduce("v_max_f32", 146, 147, ['p16', 'p32'])
    a(f"s_mov_b32 s{sT0}, 0x3fb8aa3b")
    a("v_sub_f32 v144, v144, v146"); a("v_sub_f32 v148, v148, v146")
    a(f"v_mul_f32 v144, s{sT0}, v144"); a(f"v_mul_f32 v148, s{sT0}, v148")
    a("v_exp_f32 v144, v144"); a("v_exp_f32 v148, v148")
    a("v_mul_f32 v146, v144, v145"); a("v_fmac_f32 v146, v148, v149")
    allreduce("v_add_f32", 146, 147, ['p16', 'p32'])
    a("v_rcp_f32 v146, v146")
    a("v_mul_f32 v140, v144, v146"); a("v_mul_f32 v142, v148, v146")
    a("v_mov_b32 v141, v140"); a("v_mov_b32 v143, v142")
    stamp(3)
    a("s_branch L_opchk")
    L = lab("poll"); a.label(L)
    for u in range(2): a(f"buffer_load_dwordx4 {vr(G+4*u,4)}, v100, {WSRD}, s{sT3+u} offen sc1")
    a.label("L_opchk")
    a("s_waitcnt vmcnt(0)")
    a(f"v_max3_u32 v4, v{G}, v{G+1}, v{G+2}"); a(f"v_max3_u32 v5, v{G+3}, v{G+4}, v{G+5}")
    a(f"v_max3_u32 v4, v4, v{G+6}, v{G+7}"); a("v_max_u32 v4, v4, v5")
    a("v_cmp_eq_u32 vcc, -1, v4")
    retry(L, masked=True)
    stamp(6)
    for i in range(4):
        a(f"v_lshlrev_b32 v{SU+2*i}, 16, v{G+i}"); a(f"v_and_b32 v{SU+2*i+1}, 0xffff0000, v{G+i}")
    for i in range(4):
        a(f"v_lshlrev_b32 v{SU+8+2*i}, 16, v{G+4+i}"); a(f"v_and_b32 v{SU+8+2*i+1}, 0xffff0000, v{G+4+i}")
        a(f"v_pk_mul_f32 {vr(SU+2*i,2)}, {vr(SU+2*i,2)}, v[140:141]")
    for i in range(4): a(f"v_pk_fma_f32 {vr(SU+2*i,2)}, {vr(SU+8+2*i,2)}, v[142:143], {vr(SU+2*i,2)}")
    reduce8to2(SU)
    a(f"v_cvt_pk_bf16_f32 v5, v{SU}, v{SU+1}")
    a("ds_write_b32 v101, v5")
    for g in range(4): a(f"ds_read_b128 {vr(AV+4*g,4)}, v{AA+g}")
    a(f"s_cmp_eq_u32 s{sWAVE}, 1"); a("s_cbranch_scc1 L_keep1")
    for keep in range(2):
        if keep == 1: a.label("L_keep1")
        give = 1 - keep
        for n in range(8):
            ac = give if n < 4 else keep
            g = n & 3
            if n < 4: a(f"s_waitcnt lgkmcnt({3-g})")
            a(f"v_mfma_f32_16x16x32_bf16 {vr(ACC+4*ac,4)}, {vr(AV+4*g,4)}, {vr(BW+4*(4*ac+g),4)}, {vr(ACC+4*ac,4)}")
        for i in range(4): a(f"v_min_u32 v{ACC+4*give+i}, 0xfffffffe, v{ACC+4*give+i}")
        a(f"ds_write_b128 v136, {vr(ACC+4*give,4)} offset:{L_X}")
        L = lab("xp"); a.label(L)
        a(f"ds_read_b128 {vr(G,4)}, v103 offset:{L_X}")
        a("s_waitcnt lgkmcnt(0)")
        a(f"v_max3_u32 v4, v{G}, v{G+1}, v{G+2}"); a(f"v_max_u32 v4, v4, v{G+3}")
        a("v_cmp_eq_u32 vcc, -1, v4")
        retry(L)
        for i in (0, 2): a(f"v_pk_add_f32 {vr(G+i,2)}, {vr(ACC+4*keep+i,2)}, {vr(G+i,2)}")
        for i in range(4): a(f"v_and_or_b32 v{G+i}, v{G+i}, v102, s{sTB+(i&3)}")
        a(f"buffer_store_dwordx4 {vr(G,4)}, v138, {WSRD}, s{sT5} offen sc1")
        if numa: a(f"buffer_store_dwordx4 {vr(G,4)}, v138, {WSRD}, s{sO+3} offen sc1")
        lds_signal(F_FP)
        stamp(7)
        finish_wave()

    a.label("L_H3b")
    a("v_and_b32 v4, 7, v0"); a("v_lshlrev_b32 v1, 4, v4"); a("v_lshlrev_b32 v4, 3, v4")
    a(f"s_lshl_b32 s{sT1}, s{sKVH}, 5"); a(f"s_add_u32 s{sT1}, s{sT1}, s{sJ}"); a(f"s_lshl_b32 s{sT1}, s{sT1}, 7"); a(f"s_add_u32 s{sT1}, s{sT1}, {ST}")
    lds_wait(F_STAT, 4, sleep=2)
    if fast: read_mix(5)
    if lateclr: lds_wait(F_CLR, 1, sleep=2)
    stamp(5)
    a(f"ds_read_b128 v[8:11], v1 offset:{L_ST}")
    a("s_waitcnt lgkmcnt(0)")
    a("v_mov_b32 v12, v8"); a("v_mov_b32 v14, v10")
    for x in (12, 14): allreduce("v_max_f32", x, 16, ['q2', 'r4'])
    a(f"s_mov_b32 s{sT0}, 0x3fb8aa3b")
    a("v_sub_f32 v8, v8, v12"); a("v_sub_f32 v10, v10, v14")
    a(f"v_mul_f32 v8, s{sT0}, v8"); a(f"v_mul_f32 v10, s{sT0}, v10")
    a("v_exp_f32 v16, v8"); a("v_exp_f32 v17, v10")
    a("v_mul_f32 v13, v16, v9"); a("v_mul_f32 v15, v17, v11")
    a(f"ds_write_b64 v4, v[16:17] offset:{L_FW}")
    for x in (13, 15): allreduce("v_add_f32", x, 18, ['q2', 'r4'])
    bytetag(12, 4)
    a("s_mov_b64 exec, 3")
    group_store(f"buffer_store_dwordx4 v[12:15], v1, {WSRD}, s{sT1} offen")
    lds_signal(F_FW)
    if two: a("s_branch L_final")
    else:
        stamp(6); stamp(7)
        finish_wave()

    a.label("L_H2b")
    if lateclr:
        a(f"s_lshl_b32 s{sT1}, s{sKVH}, 5"); a(f"s_add_u32 s{sT1}, s{sT1}, s{sJ}"); a(f"s_lshl_b32 s{sT2}, s{sT1}, 10"); a(f"s_add_u32 s{sT2}, s{sT2}, {OP}")
        for i in range(4): a(f"v_mov_b32 v{BT+i}, -1")
        lds_wait(F_Q, 4, sleep=2)
        read_mix(5)
        group_store(f"buffer_store_dwordx4 {vr(BT,4)}, v1, {WSRD}, s{sT2} offen")
    assert lateclr
    a("v_lshlrev_b32 v1, 13, v2"); a("v_lshl_add_u32 v1, v3, 4, v1")
    HG = WD + 32
    srd(sSRD, sW2, 1792 * 1024)
    a("v_cmp_eq_u32 vcc, 3, v2"); a("v_mov_b32 v5, 0x40000000"); a("v_cndmask_b32 v5, v1, v5, vcc")
    a(f"s_mul_i32 s{sT1}, s{sHF}, {28*1024}"); a(f"s_lshl_b32 s{sT2}, s{sCQ}, 8"); a(f"s_add_u32 s{sT1}, s{sT1}, s{sT2}"); a(f"s_add_u32 s{sT2}, s{sT1}, 4096")
    for t in range(8):
        a(f"buffer_load_dwordx4 {vr(WD+4*t,4)}, v{1 if t < 4 else 5}, s[{sSRD}:{sSRD+3}], s{sT1 if t < 4 else sT2} offen offset:{(t&3)*1024} nt")
    a("v_lshrrev_b32 v4, 3, v0"); a("v_lshlrev_b32 v4, 10, v4")
    a("v_and_b32 v33, 7, v0"); a("v_min_u32 v5, 6, v33"); a("v_lshl_add_u32 v4, v5, 4, v4")
    a(f"s_lshr_b32 s{sT1}, s{sHF}, 1"); a(f"s_lshl_b32 s{sT1}, s{sT1}, 13"); a(f"s_and_b32 s{sT2}, s{sHF}, 1"); a(f"s_mul_i32 s{sT2}, s{sT2}, 112")
    a(f"s_add_u32 s{sT1}, s{sT1}, s{sT2}"); a(f"s_add_u32 s{sT1}, s{sT1}, {HP}")
    a("s_waitcnt vmcnt(8)")
    lds_signal(F_CLR)
    L = lab("poll"); a.label(L)
    for u in range(4): a(f"buffer_load_dwordx4 {vr(HG+16+4*u,4)}, v4, {WSRD}, s{sT1} offen offset:{256*u} sc1")
    a("s_waitcnt vmcnt(0)")
    untag(HG + 16, 16, BT)
    retry(L, sleep=8, masked=True)
    for b in range(2):
        for i in range(4): a(f"v_mov_b32 v{HG+8*b+i}, v{HG+16+4*b+i}")
    for i in range(4): a(f"v_mov_b32 v{HG+16+i}, v{HG+24+i}")
    for i in range(4): a(f"v_mov_b32 v{HG+24+i}, v{HG+28+i}")
    for b in range(2):
        for i in range(4): a(f"v_permlane32_swap_b32 v{HG+8*b+i}, v{HG+8*(b+2)+i}")
    for b in range(2):
        for i in (0, 2): a(f"v_pk_add_f32 {vr(HG+8*b+i,2)}, {vr(HG+8*b+i,2)}, {vr(HG+8*(b+2)+i,2)}")
    for i in range(4): a(f"v_permlane16_swap_b32 v{HG+i}, v{HG+8+i}")
    for i in (0, 2): a(f"v_pk_add_f32 {vr(HG+i,2)}, {vr(HG+i,2)}, {vr(HG+8+i,2)}")
    for i in range(4): a(f"v_add_f32_dpp v{HG+i}, v{HG+i}, v{HG+i} row_ror:8 {DPPM}")
    for i in range(2): a(f"v_cvt_pk_bf16_f32 v{HG+8+i}, v{HG+2*i}, v{HG+2*i+1}")
    for i in range(2):
        a(f"v_lshlrev_b32 v{HG+2*i}, 16, v{HG+8+i}"); a(f"v_and_b32 v{HG+2*i+1}, 0xffff0000, v{HG+8+i}")
    a(f"s_mov_b32 s{sT0}, 0xbfb8aa3b")
    for i in range(4): a(f"v_mul_f32 v{HG+8+i}, s{sT0}, v{HG+i}")
    for i in range(4): a(f"v_exp_f32 v{HG+8+i}, v{HG+8+i}")
    for i in range(4): a(f"v_add_f32 v{HG+8+i}, 1.0, v{HG+8+i}")
    for i in range(4): a(f"v_rcp_f32 v{HG+8+i}, v{HG+8+i}")
    for i in range(4): a(f"v_mul_f32 v{HG+i}, v{HG+i}, v{HG+8+i}")
    for i in range(2): a(f"v_cvt_pk_bf16_f32 v{HG+8+i}, v{HG+2*i}, v{HG+2*i+1}")
    a("v_cmp_eq_u32 vcc, 7, v33")
    for i in range(2): a(f"v_cndmask_b32 v{HG+8+i}, v{HG+8+i}, 0, vcc")
    a("v_lshlrev_b32 v4, 6, v2"); a("v_lshl_add_u32 v4, v33, 3, v4")
    a(f"ds_write_b64 v4, {vr(HG+8,2)} offset:{L_AH}")
    a("v_and_b32 v5, 3, v0"); a("v_lshlrev_b32 v5, 6, v5"); a("v_lshl_add_u32 v5, v2, 4, v5"); a(f"v_add_u32 v5, {L_AH}, v5"); a(f"v_mov_b32 v4, {L_ZERO}")
    for g in range(4): a(f"v_cndmask_b32 v{HG+g}, v4, v5, s[{sM+2*g}:{sM+2*g+1}]")
    for g in range(4): a(f"ds_read_b128 {vr(AV+4*g,4)}, v{HG+g}")
    a("s_waitcnt lgkmcnt(0)")
    block(WD, AV, BT, ACC, 'A', first=True)
    a("v_lshlrev_b32 v4, 4, v0")
    for i in range(2): a(f"ds_write_b128 v4, {vr(ACC+4*i,4)} offset:{L_M+1024*i}")
    lds_signal(F_MLP)
    stamp(2)
    a.label("L_final")
    I = 1 << fk
    nparts = 64 if combine else 128
    nld = nparts * I // 64
    if fk > 1:
        a(f"s_cmp_lt_u32 s{sJ}, {64 // I}"); a("s_cbranch_scc1 L_fin")
        stamp(5); stamp(6); stamp(7)
        finish_wave()
        a.label("L_fin")
    assert fk == 1
    a(f"s_lshr_b32 s{sT0}, s{sKVH}, 1"); a(f"s_lshr_b32 s{sT1}, s{sJ}, 4")
    a(f"s_bfe_u32 s{sT2}, s{sJ}, 0x20002"); a(f"s_lshl_b32 s{sT2}, s{sT2}, 4"); a(f"s_and_b32 s{sT3}, s{sKVH}, 1"); a(f"s_lshl_b32 s{sT3}, s{sT3}, 3")
    a(f"s_add_u32 s{sT2}, s{sT2}, s{sT3}"); a(f"s_lshl_b32 s{sT3}, s{sCQ}, 1"); a(f"s_add_u32 s{sT2}, s{sT2}, s{sT3}")
    a(f"v_and_b32 v4, 1, v0"); a(f"v_add_u32 v4, s{sT2}, v4")
    if numa:
        a("v_lshrrev_b32 v5, 3, v0"); a("v_lshlrev_b32 v5, 14, v5"); a("v_bfe_u32 v1, v0, 1, 2"); a("v_lshl_add_u32 v5, v1, 11, v5"); a("v_lshl_add_u32 v1, v4, 4, v5")
    else:
        a(f"v_lshrrev_b32 v5, {fk}, v0"); a("v_lshlrev_b32 v5, 11, v5"); a("v_lshl_add_u32 v1, v4, 4, v5")
    a(f"s_lshl_b32 s{sT2}, s{sT0}, {18 if numa else 17}"); a(f"s_lshl_b32 s{sT3}, s{sT1}, 10"); a(f"s_add_u32 s{sT2}, s{sT2}, s{sT3}"); a(f"s_add_u32 s{sT5}, s{sT2}, {FP}")
    sso = [sT5] + list(range(54, 70))
    for u in range(1, nld): a(f"s_add_u32 s{sso[u]}, s{sT5}, {(2 if numa else 1)*2048*(64//I)*u}")
    if numa:
        for u in range(2): a(f"s_add_u32 s{sso[2+u]}, s{sso[u]}, 8192")
    a("v_and_b32 v5, 15, v4"); a("v_lshlrev_b32 v5, 3, v5"); a("v_lshrrev_b32 v4, 4, v4"); a("v_add_u32 v4, v4, v5")
    a(f"s_lshl_b32 s{sT0}, s{sT0}, 7"); a(f"s_lshl_b32 s{sT1}, s{sT1}, 2"); a(f"s_add_u32 s{sT0}, s{sT0}, s{sT1}")
    a(f"v_add_u32 v4, s{sT0}, v4"); a("v_lshlrev_b32 v4, 1, v4"); a("v_lshl_add_u32 v30, v2, 10, v4")
    srd(sSRD, sX, 4096); srd(sSRD2, sOUT, 4096)
    a(f"buffer_load_ushort v31, v30, s[{sSRD}:{sSRD+3}], 0 offen")
    if "out" in touch: a(f"buffer_load_ushort v32, v30, s[{sSRD2}:{sSRD2+3}], 0 offen")
    if "fp" in touch:
        if two: a(f"s_cmp_eq_u32 s{sWAVE}, 3"); a("s_cbranch_scc1 L_nofp")
        for u in range(4 if numa else 2): a(f"buffer_load_dwordx4 {vr(56+4*u,4)}, v1, {WSRD}, s{sso[u]} offen")
    if two and "fp" in touch: a.label("L_nofp")
    a("s_waitcnt vmcnt(0)")
    a("v_lshlrev_b32 v31, 16, v31")
    a(f"v_mov_b32 v29, s{sTAG}")
    a("s_setprio 3")
    lds_wait(F_FP, 2, sleep=1)
    stamp(5)
    FD = 40
    if pipe2:
        assert nld == 2
        GA, GB, sMISS = 56, 64, sM1
        def issue(Rg):
            cp = 2 * (((Rg - 56) // 8) & 1) if numa else 0
            for u in range(nld): a(f"buffer_load_dwordx4 {vr(Rg+4*u,4)}, v1, {WSRD}, s{sso[cp+u]} offen sc1")
        def take(Rg, done):
            a(f"s_waitcnt vmcnt({2*(depth-1)})")
            untag(Rg, 8, 8)
            a(f"s_andn2_b64 exec, exec, vcc")
            for i in range(8): a(f"v_mov_b32 v{FD+i}, v{Rg+i}")
            a(f"s_mov_b64 exec, vcc")
            a(f"s_cbranch_vccz {done}")
            issue(Rg)
        LP, DN = lab("poll"), lab("d")
        sets = [56 + 8*i for i in range(depth)]
        if two:
            a(f"s_cmp_lg_u32 s{sWAVE}, 3"); a("s_cbranch_scc1 L_nst"); a(f"s_sleep {max(stag // 2, 1)}"); a.label("L_nst")
        for i, Rg in enumerate(sets):
            if i and stag: a(f"s_sleep {stag}")
            issue(Rg)
        a.label(LP)
        for Rg in sets: take(Rg, DN)
        a(f"s_sub_u32 s{sCNT}, s{sCNT}, 1"); a(f"s_cbranch_scc0 {LP}"); a("s_endpgm")
        a.label(DN)
        a("s_mov_b64 exec, -1")
    else:
        if first_plain:
            for u in range(nld): a(f"buffer_load_dwordx4 {vr(FD+4*u,4)}, v1, {WSRD}, s{sso[u]} offen")
            a("s_branch L_fchk")
        L = lab("poll"); a.label(L)
        for u in range(nld): a(f"buffer_load_dwordx4 {vr(FD+4*u,4)}, v1, {WSRD}, s{sso[u]} offen sc1" + NT("fld"))
        if first_plain: a.label("L_fchk")
        a("s_waitcnt vmcnt(0)")
        untag(FD, 4*nld, 8)
        retry(L, sleep=fin_sleep, masked=True)
    stamp(6)
    n = nld
    while n > 1:
        n //= 2
        for u in range(n):
            for i in (0, 2): a(f"v_pk_add_f32 {vr(FD+4*u+i,2)}, {vr(FD+4*u+i,2)}, {vr(FD+4*(u+n)+i,2)}")
    a(f"v_permlane32_swap_b32 v{FD}, v{FD+2}"); a(f"v_permlane32_swap_b32 v{FD+1}, v{FD+3}")
    a(f"v_pk_add_f32 {vr(FD,2)}, {vr(FD,2)}, {vr(FD+2,2)}")
    a(f"v_permlane16_swap_b32 v{FD}, v{FD+1}")
    a(f"v_add_f32 v8, v{FD}, v{FD+1}")
    allreduce("v_add_f32", 8, 9, ['q2', 'r4', 'r8'][fk-1:])
    a("v_add_f32 v8, v8, v31")
    a("v_cvt_pk_bf16_f32 v8, v8, v8")
    m = ((1 << I) - 1) * 0x00010001
    a(f"s_mov_b32 exec_lo, {hex(m)}"); a(f"s_mov_b32 exec_hi, {hex(m)}")
    a(f"buffer_store_short v8, v30, s[{sSRD2}:{sSRD2+3}], 0 offen")
    a("s_cmp_lg_u32 s2, 0"); a("s_cbranch_scc1 L_noep")
    a("s_mov_b64 exec, 1")
    a(f"buffer_store_dword v29, v{vZ}, {WSRD}, 0 offen offset:{EP}")
    a.label("L_noep")
    a("s_mov_b64 exec, -1")
    stamp(7)
    finish_wave()

    if stamps:
        a.label("L_stamp_out")
        a("s_memtime s[100:101]")
        a("s_mov_b64 exec, 1")
        a("s_waitcnt vmcnt(0) lgkmcnt(0)")
        def amax(slot, k, inv=False):
            a(f"v_mov_b32 v8, s{sSTAMP+2*k}")
            if inv: a("v_not_b32 v8, v8")
            a(f"global_atomic_umax v{vZ}, v8, s[{sDBG}:{sDBG+1}] offset:{4*slot}")
        table = {0: [(0, 0, True), (1, 0, False), (3, 1, False), (4, 2, False), (10, 6, False), (11, 7, False)], 3: [(5, 4, False)], 4: [(2, 1, False), (6, 4, False)],
                 11: [(7, 2, False), (8, 4, False), (9, 5, False)], 2: [(12, 6, False), (13, 7, False)]}
        for w, items in table.items():
            N = lab("nx")
            a(f"s_cmp_lg_u32 s{sWAVE}, {w}"); a(f"s_cbranch_scc1 {N}")
            for slot, k, inv in items: amax(slot, k, inv)
            if w == 2:
                a("s_cmp_lg_u32 s2, 0"); a(f"s_cbranch_scc1 {N}")
                a("s_sub_u32 s100, s100, s3"); a("v_mov_b32 v8, s100"); a(f"global_store_dword v{vZ}, v8, s[{sDBG}:{sDBG+1}] offset:56")
                a(f"s_sub_u32 s100, s{sSTAMP+14}, s{sSTAMP}"); a("v_mov_b32 v8, s100"); a(f"global_store_dword v{vZ}, v8, s[{sDBG}:{sDBG+1}] offset:60")
            a.label(N)
    a.label("L_exit")
    a("s_endpgm")
    order = ["pro", "H"] + (["K1"] if lay2 else []) + ["H3c", "H0c", "H1c", "V", "K2", "rest"]
    a.L = [ln for k in order for ln in secs[k]]
    body = a.finish()
    txt = HEADER + f"; @launch grid=(256,1,1) block=(768,1,1) lds={LDS_BYTES}\n"
    txt += '.amdgcn_target "amdgcn-amd-amdhsa--gfx950"\n.text\n'
    txt += f".globl {NAME}_kernel\n.p2align 8\n.type {NAME}_kernel,@function\n" + body
    txt += f'''.section .rodata,"a"
.p2align 6
.amdhsa_kernel {NAME}_kernel
  .amdhsa_next_free_vgpr 168
  .amdhsa_next_free_sgpr 102
  .amdhsa_accum_offset 168
  .amdhsa_group_segment_fixed_size 0
  .amdhsa_kernarg_size 88
  .amdhsa_user_sgpr_count 2
  .amdhsa_user_sgpr_kernarg_segment_ptr 1
  .amdhsa_system_sgpr_workgroup_id_x 1
  .amdhsa_float_denorm_mode_32 3
.end_amdhsa_kernel
'''
    return txt

U_ = dict(pk=0, pv=0, kgate=True, wo_sig=31, touch=("out", "fp", "v", "wo"), xlast=True, kpre=3)
U_["rot"] = 0
open("k28h.s", "w").write(gen(stamps=True, **U_))
```

```python
import sys
from asmlib import *
NAME = "parallel_sum__gqa_block_cached__dense_activation_silu__decode"

EP, QP, HP, ST, OP, FP, STAMP = 0x0, 0x1000, 0xC4000, 0x138000, 0x140000, 0x180000, 0x300000
WS_SIZE = 0x400000
F_P1, F_MIX, F_Q, F_CLR, F_P, F_VISS, F_OCNT, F_FW, F_PUB, F_FP, F_WO, F_STAT, F_KISS = 0, 1, 2, 3, 4, 8, 9, 10, 11, 12, 13, 14, 15
L_ZERO, L_FW, L_Q, L_P, L_OS, L_AO, L_ST, L_X = 0x80, 0x180, 0x200, 0x600, 0x1600, 0x2e00, 0x3000, 0x3100
L_M, L_AH = 0x3900, 0x4100
F_MLP = F_PUB
F_P0 = 16
F_XN = 17
F_W2 = 18
L_XN = 0x600
LDS_BYTES = 0x4200

DOC = r'''
; ---------------------------------------------------------------------------------------------------------------
; One persistent launch, 256 workgroups (one per CU) x 12 waves.  Workgroup i: kv head = i&7, j = i>>3, batch = j>>3,
; key split = j&7 (512 keys).  The 32 workgroups of one kv head form a group and exchange data through d_ws.
;   wave 3     LayerNorm, workgroup softmax statistics
; Hand-offs carry a per-launch tag (mix of the epoch word ws[0], rewritten at the end) or an "empty" marker written in
; repeated write-through (d_debug word = request for that).  Every wait is bounded.
; ---------------------------------------------------------------------------------------------------------------
'''
HEADER = open("cdna_kernels/" + NAME + ".s.ref").read().split("; Override launch")[0]

def gen(stamps=False, gate_v=True, wo_sig=30, pk=9, pv=12, pl=0, kgate=True, fast=True, combine=True, fk=1, first_plain=False, fin_sleep=0, qplain=False, hplain=True, early_bar=False, layout=True, warm=True, tlb=0, abl=(), nt=(), kpre=4, lateclr=True, prog=True, pipe2=True, late_hp=True, diag=False, touch=(), diag2=False, xlast=False, two=False, depth=2, stag=4, numa=False, w1late=0, rot=0, lay2=True, g4k=0, omap='w0 w1 t0 t1 g0 g1 t2 t3 t4', stfirst=False, h1clr=True, qpl=False, opt=True, w2late=True, tlate=False, w2_sig=None, own_touch=True):
    pos = {k: i + 8 for i, k in enumerate(omap.split())}
    toff = lambda tt: sum(((tt >> i) & 1) << pos[f't{i}'] for i in range(5))
    NT = lambda k: ' nt' if k in nt else ''
    a = Asm()
    uid = [0]
    def lab(p):
        uid[0] += 1; return f"L_{p}{uid[0]}"
    sX, sK, sV, sWQ, sWO, sW1, sW2, sOUT, sDBG, sWS = 4, 6, 8, 10, 12, 16, 18, 20, 22, 24
    sWAVE, sKVH, sJ, sB, sS, sW = 26, 27, 28, 29, 30, 31
    sSRD, sSRD2, sSRDW = 32, 36, 40
    sT0, sT1, sT2, sT3, sT4, sT5 = 44, 45, 46, 47, 48, 49
    sCNT, sSELLO, sSELHI, sTAG = 50, 51, 52, 53
    sM = 54
    sO = 62
    sHF, sCQ, sDB, sXCC = 70, 71, 72, 73
    sM1, sM2, sHI, sMIX = 74, 76, 78, 79
    sSTAMP = 80
    sTB = 96
    vZ, vONE = 6, 7
    WSRD = f"s[{sSRDW}:{sSRDW+3}]"
    def dstamp(k):
        if stamps and diag2: a(f"s_memrealtime s[{sSTAMP+2*k}:{sSTAMP+2*k+1}]")
    def stamp(k):
        if diag2 and k in (3, 4, 6): return
        if stamps: a(f"s_memrealtime s[{sSTAMP+2*k}:{sSTAMP+2*k+1}]")
    def finish_wave():
        a("s_branch L_stamp_out" if stamps else "s_endpgm")
    def srd(dst, ptr, size):
        a(f"s_mov_b32 s{dst}, s{ptr}"); a(f"s_mov_b32 s{dst+1}, s{ptr+1}")
        a(f"s_mov_b32 s{dst+2}, {hex(size)}"); a(f"s_mov_b32 s{dst+3}, 0x20000")
    def slab_srd(ptr):
        a(f"s_add_u32 s{sSRD}, s{ptr}, s{sT5}"); a(f"s_addc_u32 s{sSRD+1}, s{ptr+1}, 0")
        a(f"s_mov_b32 s{sSRD+2}, 0x20000"); a(f"s_mov_b32 s{sSRD+3}, 0x20000")
    def step(tt):
        h0, h1 = toff(tt) & ~4095, toff(tt + 1) & ~4095
        if h0 == h1: a("s_nop 0")
        elif h1 < 0x8000: a(f"s_movk_i32 s{sO}, {h1}")
        else: a(f"s_mov_b32 s{sO}, {h1}")
    def goff(dst, bit0, base):
        if pos['g1'] == pos['g0'] + 1:
            a(f"v_bfe_u32 v5, v0, {bit0}, 2"); a(f"v_lshl_add_u32 v{dst}, v5, {pos['g0']}, v{base}")
        else:
            a(f"v_bfe_u32 v5, v0, {bit0}, 1"); a(f"v_lshl_add_u32 v{dst}, v5, {pos['g0']}, v{base}")
            a(f"v_bfe_u32 v5, v0, {bit0+1}, 1"); a(f"v_lshl_add_u32 v{dst}, v5, {pos['g1']}, v{dst}")
    def lds_wait(flag, value, sleep=1, vt=5, addr=None):
        L, D = lab("w"), lab("d")
        a.label(L)
        a(f"ds_read_b32 v{vt}, v{vZ if addr is None else addr} offset:{flag*4}")
        a("s_waitcnt lgkmcnt(0)")
        a(f"v_readfirstlane_b32 s{sT0}, v{vt}")
        a(f"s_cmp_ge_u32 s{sT0}, {value}")
        a(f"s_cbranch_scc1 {D}")
        if sleep: a(f"s_sleep {sleep}")
        a(f"s_sub_u32 s{sCNT}, s{sCNT}, 1")
        a(f"s_cbranch_scc0 {L}")
        a("s_endpgm")
        a.label(D)
    def lds_signal(flag, addr=None):
        a("s_mov_b64 exec, 1")
        a(f"ds_add_u32 v{vZ if addr is None else addr}, v{vONE} offset:{flag*4}")
        a("s_mov_b64 exec, -1")
    def retry(L, sleep=0, masked=False):
        D = lab("d")
        if masked: a("s_mov_b64 exec, vcc")
        a(f"s_cbranch_vccz {D}")
        if sleep: a(f"s_sleep {sleep}")
        a(f"s_sub_u32 s{sCNT}, s{sCNT}, 1")
        a(f"s_cbranch_scc0 {L}")
        a("s_endpgm")
        a.label(D)
        if masked: a("s_mov_b64 exec, -1")
    def read_mix(vt):
        a(f"ds_read_b32 v{vt}, v{vZ} offset:{F_MIX*4}"); a("s_waitcnt lgkmcnt(0)"); a(f"v_readfirstlane_b32 s{sMIX}, v{vt}")
    def group_store(text):
        if not fast:
            a(text + " sc1"); return
        S, D = lab("s"), lab("d")
        a(f"s_cmp_lg_u32 s{sMIX}, 0"); a(f"s_cbranch_scc1 {S}")
        a(text); a(f"s_branch {D}")
        a.label(S); a(text + " sc1"); a.label(D)
    DPPM = "row_mask:0xf bank_mask:0xf"
    def allreduce(op, x, t, steps):
        for s in steps:
            if s == 'q1': a(f"{op}_dpp v{x}, v{x}, v{x} quad_perm:[1,0,3,2] {DPPM}")
            elif s == 'q2': a(f"{op}_dpp v{x}, v{x}, v{x} quad_perm:[2,3,0,1] {DPPM}")
            elif s in ('r1', 'r2', 'r4', 'r8'): a(f"{op}_dpp v{x}, v{x}, v{x} row_ror:{s[1:]} {DPPM}")
            else:
                a(f"v_mov_b32 v{t}, v{x}")
                a(f"v_permlane{s[1:]}_swap_b32 v{x}, v{t}")
                a(f"{op} v{x}, v{x}, v{t}")
    def rnd(x):
        a(f"v_cvt_pk_bf16_f32 v{x}, v{x}, v{x}"); a(f"v_and_b32 v{x}, 0xffff0000, v{x}")
    def perms(e, D, dst):
        x = e >> 1
        sel = sSELHI if e & 1 else sSELLO
        for m in range(4):
            a(f"v_perm_b32 v{dst+m}, v{D+4*(2*m+1)+x}, v{D+4*(2*m)+x}, s{sel}")
    def emap(e, mode):
        return (e >> 2, e & 3) if mode == 'A' else (e & 1, e >> 1)
    def block(D, A, BT, ACC, mode, first=False):
        perms(0, D, BT)
        seen = set()
        for e in range(8):
            if e < 7: perms(e + 1, D, BT + 4 * ((e + 1) & 1))
            ac, g = emap(e, mode)
            c = "0" if (first and ac not in seen) else vr(ACC + 4*ac, 4)
            seen.add(ac)
            a(f"v_mfma_f32_16x16x32_bf16 {vr(ACC+4*ac,4)}, {vr(A+4*g,4)}, {vr(BT+4*(e&1),4)}, {c}")
    def block8(D, A, BT, ACC, first=False):
        perms(0, D, BT)
        for e in range(8):
            if e < 7: perms(e + 1, D, BT + 4 * ((e + 1) & 1))
            c = "0" if (first and not e & 1) else vr(ACC + 4*(e >> 1), 4)
            a(f"v_mfma_f32_16x16x32_bf16 {vr(ACC+4*(e>>1),4)}, {vr(A+4*(e&1),4)}, {vr(BT+4*(e&1),4)}, {c}")
    def mask2(src, A):
        for v in range(2):
            for m in range(4):
                a(f"v_cndmask_b32 v{A+4*v+m}, 0, v{src+m}, s[{sM1+2*v}:{sM1+2*v+1}]")
    def dense8(ACC):
        for aa in range(4):
            for p in (0, 2): a(f"v_mov_b32_dpp v{ACC+4*aa+p}, v{ACC+4*aa+p+1} row_ror:8 row_mask:0x5 bank_mask:0xc")
        for aa in range(4):
            for p in (0, 2): a(f"v_mov_b32_dpp v{ACC+4*aa+p}, v{ACC+4*aa+p} row_ror:8 row_mask:0xa bank_mask:0x3")
        for aa in range(4):
            for p in (0, 2): a(f"v_mov_b32_dpp v{ACC+4*aa+p}, v{ACC+4*aa+p+1} quad_perm:[0,1,2,3] row_mask:0xa bank_mask:0xc")
        for aa in range(4): a(f"v_permlane16_swap_b32 v{ACC+4*aa}, v{ACC+4*aa+2}")
        for aa in range(4): a(f"v_add_f32 v{ACC+4*aa}, v{ACC+4*aa}, v{ACC+4*aa+2}")
    def dense_to_lds(ACC, base):
        a("v_lshlrev_b32 v4, 5, v0"); a("v_and_b32 v4, 0x3ff, v4"); a("v_lshrrev_b32 v5, 5, v0"); a("v_lshl_add_u32 v4, v5, 2, v4")
        for aa in range(4): a(f"ds_write_b32 v4, v{ACC+4*aa} offset:{base+8*aa}")
    def transpose4(R):
        a(f"v_permlane32_swap_b32 v{R}, v{R+2}"); a(f"v_permlane32_swap_b32 v{R+1}, v{R+3}")
        a(f"v_permlane16_swap_b32 v{R}, v{R+1}"); a(f"v_permlane16_swap_b32 v{R+2}, v{R+3}")
    def mask_variants(src, A):
        for g in range(4):
            for m in range(4):
                a(f"v_cndmask_b32 v{A+4*g+m}, 0, v{src+m}, s[{sM+2*g}:{sM+2*g+1}]")
    def set_masks():
        for g in range(4):
            v = 0x000F000F << (4 * g)
            a(f"s_mov_b32 s{sM+2*g}, {hex(v)}"); a(f"s_mov_b32 s{sM+2*g+1}, {hex(v)}")
    def set_sel():
        a(f"s_mov_b32 s{sSELLO}, 0x05040100"); a(f"s_mov_b32 s{sSELHI}, 0x07060302")
    def epoch_load():
        a(f"s_load_dword s{sTAG}, s[{sWS}:{sWS+1}], {EP}")
    def make_tag():
        a("s_waitcnt lgkmcnt(0)")
        a(f"s_mul_i32 s{sTAG}, s{sTAG}, 0x9e3779b1"); a(f"s_add_u32 s{sTAG}, s{sTAG}, 0x7f4a7c15")
        for k in range(4): a(f"s_bfe_u32 s{sTB+k}, s{sTAG}, {hex(0x80000 | (8*k))}")
        a(f"s_mov_b32 s{sHI}, 0xffffff00")
    def bytetag(R, n):
        for i in range(n): a(f"v_and_b32 v{R+i}, s{sHI}, v{R+i}")
        for i in range(n): a(f"v_or_b32 v{R+i}, s{sTB+(i&3)}, v{R+i}")
    def untag(R, n, T):
        for i in range(n): a(f"v_xor_b32 v{R+i}, s{sTB+(i&3)}, v{R+i}")
        nt = n // 8
        for t in range(nt): a(f"v_or3_b32 v{T+t}, v{R+8*t}, v{R+8*t+1}, v{R+8*t+2}")
        for t in range(nt): a(f"v_or3_b32 v{T+t}, v{T+t}, v{R+8*t+3}, v{R+8*t+4}")
        for t in range(nt): a(f"v_or3_b32 v{T+t}, v{T+t}, v{R+8*t+5}, v{R+8*t+6}")
        for t in range(nt): a(f"v_or_b32 v{T+t}, v{T+t}, v{R+8*t+7}")
        for t in range(1, nt): a(f"v_or_b32 v{T}, v{T}, v{T+t}")
        a(f"v_and_b32 v{T}, 0xff, v{T}")
        a(f"v_cmp_ne_u32 vcc, 0, v{T}")
    def reduce8to2(R):
        for i in range(4): a(f"v_permlane32_swap_b32 v{R+i}, v{R+4+i}")
        for i in (0, 2): a(f"v_pk_add_f32 {vr(R+i,2)}, {vr(R+i,2)}, {vr(R+4+i,2)}")
        for i in range(2): a(f"v_permlane16_swap_b32 v{R+i}, v{R+2+i}")
        a(f"v_pk_add_f32 {vr(R,2)}, {vr(R,2)}, {vr(R+2,2)}")

    secs = {}
    def section(name):
        secs.setdefault(name, []); a.L = secs[name]
    def bar():
        if not early_bar: a("s_barrier")
    section("pro")
    a(f"{NAME}_kernel:")
    stamp(0)
    a("s_cmp_ge_u32 s2, 256"); a("s_cbranch_scc1 L_exit")
    a("s_load_dwordx16 s[4:19], s[0:1], 0")
    a("s_load_dwordx4 s[20:23], s[0:1], 64")
    a("s_load_dwordx2 s[24:25], s[0:1], 80")
    a("v_lshrrev_b32 v1, 6, v0")
    a("v_and_b32 v0, 63, v0")
    a(f"v_mov_b32 v{vZ}, 0")
    a(f"v_readfirstlane_b32 s{sWAVE}, v1")
    a(f"v_mov_b32 v{vONE}, 0")
    a("v_lshlrev_b32 v2, 3, v0")
    a(f"ds_write_b64 v2, v[{vZ}:{vONE}]")
    a(f"v_mov_b32 v{vONE}, 1")
    a(f"s_and_b32 s{sKVH}, s2, 7"); a(f"s_lshr_b32 s{sJ}, s2, 3")
    a(f"s_lshr_b32 s{sB}, s{sJ}, 3"); a(f"s_and_b32 s{sS}, s{sJ}, 7")
    a(f"s_mov_b32 s{sCNT}, 0x40000")
    a("v_lshrrev_b32 v2, 4, v0"); a("v_and_b32 v3, 15, v0")
    if not early_bar: a(f"s_cmp_lt_u32 s{sWAVE}, 4"); a("s_cbranch_scc1 L_H")
    a(f"s_lshl_b32 s{sT0}, s{sB}, 3"); a(f"s_add_u32 s{sT0}, s{sT0}, s{sKVH}"); a(f"s_lshl_b32 s{sT0}, s{sT0}, 20")
    a(f"s_lshl_b32 s{sT1}, s{sS}, 17"); a(f"s_add_u32 s{sT0}, s{sT0}, s{sT1}")
    a(f"s_and_b32 s{sW}, s{sWAVE}, 3")
    if pos['w1'] == pos['w0'] + 1: a(f"s_lshl_b32 s{sT1}, s{sW}, {pos['w0']}")
    else:
        a(f"s_and_b32 s{sT1}, s{sW}, 1"); a(f"s_lshl_b32 s{sT1}, s{sT1}, {pos['w0']}"); a(f"s_add_u32 s{sT0}, s{sT0}, s{sT1}"); a(f"s_lshr_b32 s{sT1}, s{sW}, 1"); a(f"s_lshl_b32 s{sT1}, s{sT1}, {pos['w1']}")
    a(f"s_add_u32 s{sT5}, s{sT0}, s{sT1}")
    if rot: a(f"s_mul_i32 s{sO}, s{sJ}, {4096*rot}"); a(f"s_mov_b32 s{sO+1}, 0x1f000"); a(f"s_and_b32 s{sO}, s{sO}, s{sO+1}")
    else: a(f"s_mov_b32 s{sO}, 0")
    if not early_bar: a(f"s_cmp_ge_u32 s{sWAVE}, 8"); a("s_cbranch_scc1 L_V")

    KD = 40
    a("v_lshlrev_b32 v4, 6, v2"); a("v_and_b32 v5, 3, v0"); a("v_lshl_add_u32 v4, v5, 4, v4")
    a("v_bfe_u32 v5, v0, 2, 2"); a("v_lshl_add_u32 v36, v5, 8, v4")
    goff(1, 2, 4)
    if tlb == 3:
        a(f"s_lshl_b32 s64, s2, 12"); a(f"s_lshl_b32 s65, s{sB}, 20"); a("s_add_u32 s65, s65, s64"); a("s_and_b32 s66, s2, 63"); a("s_lshl_b32 s66, s66, 6")
    a("s_waitcnt lgkmcnt(0)")
    if tlb == 3:
        a(f"s_cmp_lg_u32 s{sW}, 0"); a("s_cbranch_scc1 L_ntlb")
        a(f"s_load_dword s70, s[{sWQ}:{sWQ+1}], s65"); a(f"s_load_dword s71, s[{sW1}:{sW1+1}], s64"); a(f"s_load_dword s72, s[{sX}:{sX+1}], s66")
        a.label("L_ntlb")
    if early_bar:
        a("s_barrier")
        a(f"s_cmp_lt_u32 s{sWAVE}, 4"); a("s_cbranch_scc1 L_H")
        a(f"s_cmp_ge_u32 s{sWAVE}, 8"); a("s_cbranch_scc1 L_V")
    slab_srd(sK)
    stamp(1)
    for tt in range(32):
        if tt == kpre and not early_bar:
            if lay2: a("s_branch L_K1"); section("K1"); a("; ---- K waves: remaining loads"); a.label("L_K1")
            a("s_barrier")
            if stamps and diag: a(f"s_waitcnt vmcnt({kpre-1})"); stamp(3)
        B, t8 = tt >> 3, tt & 7
        t = 4 * (2*B + (t8 & 1)) + (t8 >> 1)
        a(f"buffer_load_dwordx4 {vr(KD+4*t,4)}, v1, s[{sSRD}:{sSRD+3}], s{sO} offen offset:{toff(tt) & 4095} nt")
        if tt < 31: step(tt)
        if pk and pk <= tt < 31: a(f"s_waitcnt vmcnt({pk})")
    if kgate: lds_signal(F_KISS)
    stamp(2)
    if layout: a("s_branch L_K2"); section("K2"); a("; ---- K waves: scores and local softmax"); a.label("L_K2")
    if stamps: srd(sSRDW, sWS, WS_SIZE)
    a(f"s_mov_b32 s{sM1}, 0xaaaaaaaa"); a(f"s_mov_b32 s{sM1+1}, 0xaaaaaaaa")
    a(f"s_mov_b32 s{sM2}, 0xcccccccc"); a(f"s_mov_b32 s{sM2+1}, 0xcccccccc")
    a("v_lshlrev_b32 v37, 8, v2"); a("v_lshl_add_u32 v37, v3, 2, v37")
    a(f"s_lshl_b32 s{sT1}, s{sW}, 10"); a(f"v_add_u32 v37, s{sT1}, v37")
    a("v_lshlrev_b32 v38, 3, v2"); a(f"s_lshl_b32 s{sT1}, s{sW}, 5"); a(f"v_add_u32 v38, s{sT1}, v38")
    a(f"s_lshl_b32 s{sT1}, s{sW}, 2"); a(f"v_mov_b32 v39, s{sT1}")
    lds_wait(F_Q, 4, sleep=2)
    a(f"ds_read_b128 v[8:11], v36 offset:{L_Q}")
    a("s_waitcnt vmcnt(0) lgkmcnt(0)")
    stamp(4)
    QR, T0, Y = 8, 12, 28
    def Dreg(u): return T0 if u == 0 else KD + 16 * (u - 1)
    def mf(u):
        for jj in range(4):
            a(f"v_mfma_f32_16x16x32_bf16 {vr(Dreg(u)+4*jj,4)}, {vr(QR,4)}, {vr(KD+16*u+4*jj,4)}, 0")
    ZR = [32, 33, 34, 35, 12, 13, 14, 15]
    mf(0)
    for u in range(8):
        if u < 7: mf(u + 1)
        D = Dreg(u)
        for s in range(4):
            for jj in range(4):
                q = f"quad_perm:[{s},{s},{s},{s}] {DPPM}"
                if s == 0: a(f"v_mov_b32_dpp v{Y+jj}, v{D+4*jj} {q}")
                else: a(f"v_add_f32_dpp v{Y+jj}, v{D+4*jj+s}, v{Y+jj} {q}")
        a(f"v_cndmask_b32 v{Y}, v{Y}, v{Y+1}, s[{sM1}:{sM1+1}]")
        a(f"v_cndmask_b32 v{Y+2}, v{Y+2}, v{Y+3}, s[{sM1}:{sM1+1}]")
        a(f"v_cndmask_b32 v{ZR[u]}, v{Y}, v{Y+2}, s[{sM2}:{sM2+1}]")
    a(f"s_mov_b32 s{sT1}, 0x3db504f3")
    for B in range(4): a(f"v_cvt_pk_bf16_f32 v{Y+B}, v{ZR[2*B]}, v{ZR[2*B+1]}")
    for B in range(4):
        z0, z1 = ZR[2*B], ZR[2*B+1]
        a(f"v_lshlrev_b32 v{z0}, 16, v{Y+B}"); a(f"v_and_b32 v{z1}, 0xffff0000, v{Y+B}")
        a(f"v_mul_f32 v{z0}, s{sT1}, v{z0}"); a(f"v_mul_f32 v{z1}, s{sT1}, v{z1}")
        a(f"v_cvt_pk_bf16_f32 v{Y+B}, v{z0}, v{z1}")
    for B in range(4):
        a(f"v_lshlrev_b32 v{ZR[2*B]}, 16, v{Y+B}"); a(f"v_and_b32 v{ZR[2*B+1]}, 0xffff0000, v{Y+B}")
    MX, SM = 16, 17
    a(f"v_max3_f32 v{MX}, v{ZR[0]}, v{ZR[1]}, v{ZR[2]}"); a(f"v_max3_f32 v{MX}, v{MX}, v{ZR[3]}, v{ZR[4]}")
    a(f"v_max3_f32 v{MX}, v{MX}, v{ZR[5]}, v{ZR[6]}"); a(f"v_max_f32 v{MX}, v{MX}, v{ZR[7]}")
    allreduce("v_max_f32", MX, 18, ['r8', 'r4', 'r2', 'r1'])
    a(f"s_mov_b32 s{sT1}, 0x3fb8aa3b")
    for z in ZR: a(f"v_sub_f32 v{z}, v{z}, v{MX}")
    for z in ZR: a(f"v_mul_f32 v{z}, s{sT1}, v{z}")
    for z in ZR: a(f"v_exp_f32 v{z}, v{z}")
    for B in range(4): a(f"v_cvt_pk_bf16_f32 v{Y+B}, v{ZR[2*B]}, v{ZR[2*B+1]}")
    for B in range(4): a(f"ds_write_b32 v37, v{Y+B} offset:{L_P + 64*B}")
    lds_signal(F_P, addr=39)
    a(f"v_add_f32 v{SM}, v{ZR[0]}, v{ZR[1]}")
    for z in ZR[2:]: a(f"v_add_f32 v{SM}, v{SM}, v{z}")
    allreduce("v_add_f32", SM, 18, ['r8', 'r4', 'r2', 'r1'])
    a(f"ds_write_b64 v38, v[{MX}:{SM}] offset:{L_ST}")
    lds_signal(F_STAT)
    stamp(5)
    finish_wave()

    if layout: section("V")
    a("; ---- V waves"); a.label("L_V")
    VD, AV, BT, ACC = 40, 8, 24, 32
    a("v_lshlrev_b32 v4, 4, v3"); goff(1, 4, 4)
    if not early_bar:
        a("s_waitcnt lgkmcnt(0)")
        if tlb in (1, 2):
            a(f"s_load_dword s64, s[{sK}:{sK+1}], s{sO}"); a(f"s_load_dword s65, s[{sV}:{sV+1}], s{sO}")
            if tlb >= 2:
                a(f"s_lshl_b32 s{sT1}, s{sKVH}, 19")
                a(f"s_load_dword s66, s[{sWO}:{sWO+1}], s{sT1}"); a(f"s_load_dword s67, s[{sW2}:{sW2+1}], 0")
                a(f"s_load_dword s68, s[{sOUT}:{sOUT+1}], 0"); a(f"s_load_dword s69, s[{sW1}:{sW1+1}], 0")
                a(f"s_lshl_b32 s{sT1}, s{sJ}, 17"); a(f"s_load_dword s63, s[{sWQ}:{sWQ+1}], s{sT1}")
        a("s_barrier")
    slab_srd(sV)
    if "v" in touch:
        a(f"s_cmp_lg_u32 s{sW}, 3"); a("s_cbranch_scc1 L_nvt")
        lds_wait(F_P1, 1, sleep=2)
        a("s_mov_b64 exec, 1"); a(f"buffer_load_dword v8, v{vZ}, s[{sSRD}:{sSRD+3}], s{sO} offen nt"); a("s_mov_b64 exec, -1")
        a.label("L_nvt")
    def vloads(pace, last):
        for tt in range(32):
            a(f"buffer_load_dwordx4 {vr(VD+4*tt,4)}, v1, s[{sSRD}:{sSRD+3}], s{sO} offen offset:{toff(tt) & 4095} nt")
            if tt < 31: step(tt)
            if pace and pace <= tt < 31: a(f"s_waitcnt vmcnt({pace})")
            if last and w2_sig is not None and tt == w2_sig: lds_signal(F_W2)
            if wo_sig is not None and tt == wo_sig:
                if last: lds_signal(F_WO)
                elif not gate_v:
                    a(f"s_cmp_lg_u32 s{sW}, 3"); a("s_cbranch_scc1 L_nowo"); lds_signal(F_WO); a.label("L_nowo")
    if gate_v:
        a(f"s_cmp_lg_u32 s{sW}, 3"); a("s_cbranch_scc1 L_Vgo")
        lds_wait(F_VISS, 3, sleep=1)
        stamp(1)
        vloads(pl, True)
        a("s_branch L_Vissued")
        a.label("L_Vgo")
    if kgate: lds_wait(F_KISS, 4, sleep=1)
    stamp(1)
    vloads(pv, False)
    a.label("L_Vissued")
    lds_signal(F_VISS)
    stamp(2)
    set_sel(); set_masks()
    srd(sSRDW, sWS, WS_SIZE)
    a("v_and_b32 v3, 3, v0"); a("v_lshlrev_b32 v3, 8, v3"); a("v_lshl_add_u32 v3, v2, 4, v3")
    a(f"s_lshl_b32 s{sT1}, s{sW}, 10"); a(f"s_add_u32 s{sT1}, s{sT1}, {L_P}"); a(f"v_add_u32 v1, s{sT1}, v3")
    a(f"v_mov_b32 v{BT}, {L_ZERO}")
    for g in range(4): a(f"v_cndmask_b32 v{2+g}, v{BT}, v1, s[{sM+2*g}:{sM+2*g+1}]")
    a(f"s_lshl_b32 s{sT1}, s{sW}, 2"); a(f"v_mov_b32 v{BT}, s{sT1}")
    lds_wait(F_P, 1, sleep=2, vt=BT+1, addr=BT)
    stamp(3)
    def vblock(B):
        for g in range(4): a(f"ds_read_b128 {vr(AV+4*g,4)}, v{2+g} offset:{64*B}")
        a(f"s_waitcnt vmcnt({24-8*B}) lgkmcnt(0)")
        block(VD + 32*B, AV, BT, ACC, 'B', first=(B == 0))
    for B in range(3): vblock(B)
    a(f"s_cmp_eq_u32 s{sW}, 3"); a("s_cbranch_scc1 L_Vlast")
    vblock(3)
    a(f"s_lshl_b32 s{sT1}, s{sW}, 11"); a("v_lshlrev_b32 v1, 4, v0"); a(f"v_add_u32 v1, s{sT1}, v1")
    a(f"ds_write_b128 v1, {vr(ACC,4)} offset:{L_OS}"); a(f"ds_write_b128 v1, {vr(ACC+4,4)} offset:{L_OS+1024}")
    lds_signal(F_OCNT)
    stamp(5)
    finish_wave()
    a("; ---- wave 11: merge and publish"); a.label("L_Vlast")
    a("s_setprio 3")
    OSR, FWR, TOT = VD, VD + 24, VD + 40
    a("v_lshlrev_b32 v95, 4, v0")
    a(f"s_lshl_b32 s{sT1}, s{sKVH}, 5"); a(f"s_add_u32 s{sT1}, s{sT1}, s{sJ}"); a(f"s_lshl_b32 s{sT1}, s{sT1}, 10")
    a(f"s_add_u32 s{sT5}, s{sT1}, {OP}")
    if fast: read_mix(94)
    lds_wait(F_OCNT, 3, sleep=1, vt=94)
    lds_wait(F_FW, 1, sleep=1, vt=94)
    for w in range(3):
        for ac in range(2): a(f"ds_read_b128 {vr(OSR+8*w+4*ac,4)}, v95 offset:{L_OS+2048*w+1024*ac}")
    for w in range(4): a(f"ds_read_b128 {vr(FWR+4*w,4)}, v{vZ} offset:{L_FW+16*w}")
    a("s_waitcnt lgkmcnt(0)")
    for ac in range(2):
        for h in range(4): a(f"v_mul_f32 v{TOT+4*ac+h}, v{FWR+h}, v{OSR+4*ac+h}")
    for w in range(1, 3):
        for ac in range(2):
            for h in range(4): a(f"v_fmac_f32 v{TOT+4*ac+h}, v{FWR+4*w+h}, v{OSR+8*w+4*ac+h}")
    for g in range(4): a(f"ds_read_b128 {vr(AV+4*g,4)}, v{2+g} offset:{64*3}")
    if prog:
        PB, D3 = VD + 56, VD + 96
        for m in range(4):
            a(f"s_waitcnt vmcnt({6-2*m})" + (" lgkmcnt(0)" if m == 3 else ""))
            if m == 3: stamp(4)
            for e in range(8):
                a(f"v_perm_b32 v{PB+4*e+m}, v{D3+4*(2*m+1)+(e>>1)}, v{D3+4*(2*m)+(e>>1)}, s{sSELHI if e & 1 else sSELLO}")
                if m == 3 and e >= 2:
                    ac, g = emap(e - 2, 'B')
                    a(f"v_mfma_f32_16x16x32_bf16 {vr(ACC+4*ac,4)}, {vr(AV+4*g,4)}, {vr(PB+4*(e-2),4)}, {vr(ACC+4*ac,4)}")
        for e in (6, 7):
            ac, g = emap(e, 'B')
            a(f"v_mfma_f32_16x16x32_bf16 {vr(ACC+4*ac,4)}, {vr(AV+4*g,4)}, {vr(PB+4*e,4)}, {vr(ACC+4*ac,4)}")
    else:
        a(f"s_waitcnt vmcnt(0) lgkmcnt(0)")
        stamp(4)
        block(VD + 96, AV, BT, ACC, 'B')
    for ac in range(2):
        for h in range(4): a(f"v_fmac_f32 v{TOT+4*ac+h}, v{FWR+12+h}, v{ACC+4*ac+h}")
    for h in range(4): a(f"v_cvt_pk_bf16_f32 v{BT+h}, v{TOT+h}, v{TOT+4+h}")
    transpose4(BT)
    for h in range(4): a(f"v_min_u32 v{BT+h}, 0xfffffffe, v{BT+h}")
    group_store(f"buffer_store_dwordx4 {vr(BT,4)}, v95, {WSRD}, s{sT5} offen")
    stamp(5)
    finish_wave()

    if layout: section("H")
    a("; ---- helper waves, first loads"); a.label("L_H")
    dstamp(3)
    a("s_setprio 2")
    AV, BT, ACC, WD, XS, U, XA = 8, 24, 32, 40, 104, 120, 136
    def xn_addr(s_k0bytes):
        a("v_and_b32 v4, 3, v0"); a("v_lshlrev_b32 v4, 10, v4"); a("v_lshl_add_u32 v4, v2, 5, v4")
        a("v_bfe_u32 v5, v0, 2, 1"); a("v_lshl_add_u32 v4, v5, 4, v4"); a(f"s_add_u32 s{sT0}, s{s_k0bytes}, {L_XN}"); a(f"v_add_u32 v4, s{sT0}, v4")
        a(f"v_mov_b32 v5, {L_ZERO}"); a("s_mov_b32 vcc_lo, 0x00ff00ff"); a("s_mov_b32 vcc_hi, 0x00ff00ff")
        a("v_cndmask_b32 v160, v5, v4, vcc"); a("v_cndmask_b32 v161, v4, v5, vcc")
    def hconst():
        a("v_mov_b32 v166, 0")
        set_sel(); set_masks()
        a(f"s_lshr_b32 s{sT0}, s{sJ}, 2"); a(f"s_lshl_b32 s{sHF}, s{sKVH}, 3"); a(f"s_add_u32 s{sHF}, s{sHF}, s{sT0}")
        a(f"s_and_b32 s{sCQ}, s{sJ}, 3")
        a(f"s_getreg_b32 s{sXCC}, hwreg(HW_REG_XCC_ID, 0, 4)")
    if not lay2: hconst()
    a(f"s_cmp_ge_u32 s{sWAVE}, 2"); a("s_cbranch_scc1 L_H23")
    a("v_lshrrev_b32 v4, 3, v0"); a("v_and_b32 v5, 7, v0")
    a(f"s_cmp_eq_u32 s{sWAVE}, 1"); a("s_cbranch_scc1 L_H1a")
    def ln_loads(nblk, s_k0bytes):
        srd(sSRD2, sX, 4096)
        for i in range(4): a(f"buffer_load_dwordx4 {vr(XS+4*i,4)}, v160, s[{sSRD2}:{sSRD2+3}], 0 offen offset:{256*i}" + NT("x"))
        for B in range(nblk): a(f"buffer_load_dwordx4 {vr(XA+4*B,4)}, v161, s[{sSRD2}:{sSRD2+3}], s{s_k0bytes} offen offset:{128*B}")
    MEAN, RS = 162, 164
    def ln_stats():
        for i in range(16):
            a(f"v_lshlrev_b32 v{U+2*i}, 16, v{WD+i}"); a(f"v_and_b32 v{U+2*i+1}, 0xffff0000, v{WD+i}")
        for i in range(8): a(f"v_pk_add_f32 {vr(XS+2*i,2)}, {vr(U+4*i,2)}, {vr(U+4*i+2,2)}")
        for i in range(4): a(f"v_pk_add_f32 {vr(XS+2*i,2)}, {vr(XS+2*i,2)}, {vr(XS+8+2*i,2)}")
        for i in range(2): a(f"v_pk_add_f32 {vr(XS+2*i,2)}, {vr(XS+2*i,2)}, {vr(XS+4+2*i,2)}")
        a(f"v_pk_add_f32 {vr(XS,2)}, {vr(XS,2)}, {vr(XS+2,2)}")
        a(f"v_add_f32 v{MEAN}, v{XS}, v{XS+1}")
        allreduce("v_add_f32", MEAN, XS, ['r8', 'r4', 'r2', 'r1'])
        a(f"v_mul_f32 v{MEAN}, 0xbb000000, v{MEAN}")
        a(f"v_mov_b32 v{MEAN+1}, v{MEAN}")
        for i in range(16): a(f"v_pk_add_f32 {vr(U+2*i,2)}, {vr(U+2*i,2)}, {vr(MEAN,2)}")
        for i in range(4): a(f"v_pk_mul_f32 {vr(XS+2*i,2)}, {vr(U+2*i,2)}, {vr(U+2*i,2)}")
        for i in range(4, 16): a(f"v_pk_fma_f32 {vr(XS+2*(i&3),2)}, {vr(U+2*i,2)}, {vr(U+2*i,2)}, {vr(XS+2*(i&3),2)}")
        for i in range(2): a(f"v_pk_add_f32 {vr(XS+2*i,2)}, {vr(XS+2*i,2)}, {vr(XS+4+2*i,2)}")
        a(f"v_pk_add_f32 {vr(XS,2)}, {vr(XS,2)}, {vr(XS+2,2)}")
        a(f"v_add_f32 v{RS}, v{XS}, v{XS+1}")
        allreduce("v_add_f32", RS, XS, ['r8', 'r4', 'r2', 'r1'])
        a(f"v_mul_f32 v{RS}, 0x3b000000, v{RS}")
        rnd(RS)
        a(f"v_add_f32 v{RS}, 0x3727c5ac, v{RS}")
        rnd(RS)
        a(f"v_sqrt_f32 v{RS}, v{RS}")
        rnd(RS)
        a(f"v_rcp_f32 v{RS}, v{RS}")
        rnd(MEAN)
        a(f"v_mov_b32 v{MEAN+1}, v{MEAN}"); a(f"v_mov_b32 v{RS+1}, v{RS}")
    def ln_apply(src):
        for i in range(4):
            a(f"v_lshlrev_b32 v{U+2*i}, 16, v{src+i}"); a(f"v_and_b32 v{U+2*i+1}, 0xffff0000, v{src+i}")
        for i in range(4): a(f"v_pk_add_f32 {vr(U+2*i,2)}, {vr(U+2*i,2)}, {vr(MEAN,2)}")
        for i in range(4): a(f"v_cvt_pk_bf16_f32 v{src+i}, v{U+2*i}, v{U+2*i+1}")
        for i in range(4):
            a(f"v_lshlrev_b32 v{U+2*i}, 16, v{src+i}"); a(f"v_and_b32 v{U+2*i+1}, 0xffff0000, v{src+i}")
        for i in range(4): a(f"v_pk_mul_f32 {vr(U+2*i,2)}, {vr(U+2*i,2)}, {vr(RS,2)}")
        for i in range(4): a(f"v_cvt_pk_bf16_f32 v{src+i}, v{U+2*i}, v{U+2*i+1}")

    A16 = 8 + 16
    a("v_lshlrev_b32 v1, 16, v4"); a("v_lshl_add_u32 v1, v5, 4, v1")
    a(f"s_lshl_b32 s{sT1}, s{sB}, 8")
    a(f"s_lshl_b32 s{sT2}, s{sB}, 20"); a(f"s_lshl_b32 s{sT3}, s{sKVH}, 10"); a(f"s_add_u32 s{sT2}, s{sT2}, s{sT3}")
    a(f"s_lshl_b32 s{sT3}, s{sS}, 7"); a(f"s_add_u32 s{sT2}, s{sT2}, s{sT3}")
    a("s_waitcnt lgkmcnt(0)")
    dstamp(4)
    epoch_load()
    dstamp(6)
    srd(sSRD, sWQ, 0x400000)
    for B in range(2):
        for t in range(8):
            a(f"buffer_load_dwordx4 {vr(WD+32*B+4*t,4)}, v1, s[{sSRD}:{sSRD+3}], s{sT2} offen nt")
            if not (B == 1 and t == 7): a(f"s_add_u32 s{sT2}, s{sT2}, {8192 if t < 7 else 8192*57}")
    bar()
    stamp(1)
    if layout: a("s_branch L_H0c"); section("H0c"); a("; ---- wave 0: q partials"); a.label("L_H0c")
    if lay2: hconst()
    srd(sSRDW, sWS, WS_SIZE)
    xn_addr(sT1)
    make_tag()
    a("v_lshrrev_b32 v4, 5, v0"); a("v_and_b32 v5, 31, v0")
    a("v_lshlrev_b32 v166, 14, v4"); a("v_lshl_add_u32 v166, v5, 4, v166")
    a("v_mul_u32_u24 v165, 12, v5"); a("v_lshl_add_u32 v165, v4, 8, v165")
    a(f"v_cmp_eq_u32 s[{sO}:{sO+1}], 21, v5")
    a(f"s_lshl_b32 s{sT4}, s{sKVH}, 16"); a(f"s_lshr_b32 s{sT3}, s{sS}, 1"); a(f"s_lshl_b32 s{sT3}, s{sT3}, 12"); a(f"s_add_u32 s{sT4}, s{sT4}, s{sT3}")
    a(f"s_lshl_b32 s{sT3}, s{sB}, 10"); a(f"s_add_u32 s{sT4}, s{sT4}, s{sT3}"); a(f"s_and_b32 s{sT3}, s{sS}, 1"); a(f"s_lshl_b32 s{sT3}, s{sT3}, 9")
    a(f"s_add_u32 s{sT4}, s{sT4}, s{sT3}"); a(f"s_add_u32 s{sT4}, s{sT4}, {QP}"); a(f"s_add_u32 s{sT5}, s{sT4}, {2*16384}")
    for i in range(2): a(f"v_mov_b32 v{U+4*i+3}, s{sTAG}")
    a(f"v_mov_b32 v{U+8}, s{sXCC}")
    a(f"v_add_u32 v167, {L_OS}, v165")
    lds_wait(F_XN, 1, sleep=1)
    stamp(5)
    for B in range(2):
        for v in range(2): a(f"ds_read_b128 {vr(XA+8*B+4*v,4)}, v{160+v} offset:{128*B}")
    a("s_waitcnt vmcnt(8) lgkmcnt(0)")
    block8(WD, XA, 16, A16, first=True)
    if not lateclr: lds_wait(F_CLR, 1, sleep=1)
    a("s_waitcnt vmcnt(0)")
    block8(WD + 32, XA + 8, 16, A16)
    dense8(A16)
    dense_to_lds(A16, L_OS)
    for i in range(2):
        a(f"ds_read2_b32 {vr(U+4*i,2)}, v167 offset0:{128*i} offset1:{128*i+1}")
        a(f"ds_read_b32 v{U+4*i+2}, v165 offset:{L_OS+512*i+8}")
    a("s_waitcnt lgkmcnt(0)")
    for i in range(2): a(f"v_cndmask_b32 v{U+4*i+1}, v{U+4*i+1}, v{U+8}, s[{sO}:{sO+1}]")
    def qp_store(fl):
        a("s_mov_b32 exec_lo, 0x00ffffff"); a("s_mov_b32 exec_hi, 0x00ffffff")
        a(f"buffer_store_dwordx4 {vr(U,4)}, v166, {WSRD}, s{sT4} offen" + fl)
        a(f"buffer_store_dwordx4 {vr(U+4,4)}, v166, {WSRD}, s{sT5} offen" + fl)
        a("s_mov_b64 exec, -1")
    qp_store("" if qpl else " sc1")
    stamp(2)
    if w1late == 1: lds_signal(F_P0)
    a("s_waitcnt vmcnt(0)")
    lds_signal(F_P1)
    a("s_branch L_qgather")

    if layout: section("H")
    a.label("L_H1a")
    a(f"s_mov_b32 s{sT0}, {8*3584}"); a(f"v_mul_lo_u32 v1, v4, s{sT0}"); a("v_lshl_add_u32 v1, v5, 4, v1")
    a("v_cmp_eq_u32 vcc, 7, v5"); a("v_mov_b32 v4, 0x40000000"); a("v_cndmask_b32 v1, v1, v4, vcc")
    a(f"s_lshl_b32 s{sT1}, s{sS}, 7")
    a(f"s_lshl_b32 s{sT0}, s{sKVH}, 2"); a(f"s_add_u32 s{sT0}, s{sT0}, s{sB}")
    a(f"s_mul_i32 s{sT2}, s{sS}, {64*3584}"); a(f"s_mul_i32 s{sT3}, s{sT0}, 112"); a(f"s_add_u32 s{sT2}, s{sT2}, s{sT3}")
    a("s_waitcnt lgkmcnt(0)")
    epoch_load()
    def w1_loads():
        for t in range(8):
            a(f"buffer_load_dwordx4 {vr(WD+4*t,4)}, v1, s[{sSRD}:{sSRD+3}], s{sT2} offen nt")
            if t < 7: a(f"s_add_u32 s{sT2}, s{sT2}, 3584")
    srd(sSRD, sW1, 512 * 3584)
    w1_loads()
    bar()
    stamp(1)
    a("s_branch L_H1c"); section("H1c"); a("; ---- wave 1: hidden partials"); a.label("L_H1c")
    hconst()
    srd(sSRDW, sWS, WS_SIZE)
    xn_addr(sT1)
    make_tag()
    a(f"s_lshl_b32 s{sO}, s{sKVH}, 5"); a(f"s_add_u32 s{sO}, s{sO}, s{sJ}"); a(f"s_lshl_b32 s{sO}, s{sO}, 10"); a(f"s_add_u32 s{sO}, s{sO}, {HP}")
    a("v_lshlrev_b32 v166, 4, v0")
    lds_wait(F_XN, 1, sleep=1)
    for v in range(2): a(f"ds_read_b128 {vr(XA+4*v,4)}, v{160+v}")
    a("s_waitcnt vmcnt(0) lgkmcnt(0)")
    block8(WD, XA, 16, A16, first=True)
    dense8(A16)
    dense_to_lds(A16, L_OS + 2048)
    a(f"ds_read_b128 {vr(XA,4)}, v166 offset:{L_OS+2048}")
    a("s_waitcnt lgkmcnt(0)")
    bytetag(XA, 4)
    if opt:
        a(f"s_add_u32 s{sO+1}, s{sO}, {OP - HP}")
        for i in range(4): a(f"v_mov_b32 v{XA+4+i}, -1")
        a(f"buffer_store_dwordx4 {vr(XA,4)}, v166, {WSRD}, s{sO} offen")
        a(f"buffer_store_dwordx4 {vr(XA+4,4)}, v166, {WSRD}, s{sO+1} offen")
    stamp(2)
    a("s_branch L_qwait")

    if layout: section("H")
    a.label("L_H23")
    a("s_waitcnt lgkmcnt(0)")
    epoch_load()
    a(f"s_cmp_eq_u32 s{sWAVE}, 3"); a("s_cbranch_scc1 L_H3a")
    srd(sSRDW, sWS, WS_SIZE)
    for i in range(4): a(f"v_mov_b32 v{BT+i}, -1")
    a("v_lshlrev_b32 v1, 4, v0")
    a(f"s_lshl_b32 s{sT1}, s{sKVH}, 5"); a(f"s_add_u32 s{sT1}, s{sT1}, s{sJ}")
    a(f"s_lshl_b32 s{sT2}, s{sT1}, 10"); a(f"s_add_u32 s{sT2}, s{sT2}, {OP}")
    if not lateclr: a(f"buffer_store_dwordx4 {vr(BT,4)}, v1, {WSRD}, s{sT2} offen sc1" + NT("clr"))
    if warm:
        a(f"s_cmp_ge_u32 s{sJ}, (L_exit - L_H3c) / 1024"); a("s_cbranch_scc1 L_nowarm")
        a(f"s_getpc_b64 s[{sT0}:{sT1}]")
        a.label("L_pc")
        a(f"s_add_u32 s{sT0}, s{sT0}, L_exit - L_pc - 1024"); a(f"s_addc_u32 s{sT1}, s{sT1}, 0")
        a(f"s_lshl_b32 s{sT2}, s{sJ}, 10"); a(f"s_sub_u32 s{sT0}, s{sT0}, s{sT2}"); a(f"s_subb_u32 s{sT1}, s{sT1}, 0")
        a("v_lshlrev_b32 v1, 4, v0")
        a(f"global_load_dwordx4 v[8:11], v1, s[{sT0}:{sT1}]")
        a.label("L_nowarm")
    if combine:
        for i in range(2): a(f"ds_write_b128 v1, {vr(BT,4)} offset:{L_X+1024*i}")
        if w2late:
            for i in range(2): a(f"ds_write_b128 v1, {vr(BT,4)} offset:{L_M+1024*i}")
    bar()
    if not lateclr:
        a("s_waitcnt vmcnt(0)")
        lds_signal(F_CLR)
    a("s_branch L_H23b")
    a.label("L_H3a")
    a("v_lshlrev_b32 v160, 10, v2"); a("v_lshl_add_u32 v160, v3, 4, v160")
    srd(sSRD2, sX, 4096)
    for i in range(4): a(f"buffer_load_dwordx4 {vr(WD+4*i,4)}, v160, s[{sSRD2}:{sSRD2+3}], 0 offen offset:{256*i}")
    bar()
    a("s_branch L_H3c"); section("H3c"); a("; ---- wave 3: LayerNorm"); a.label("L_H3c")
    srd(sSRDW, sWS, WS_SIZE)
    a("s_waitcnt vmcnt(0)")
    ln_stats()
    for i in range(4):
        ln_apply(WD + 4*i)
        a(f"ds_write_b128 v160, {vr(WD+4*i,4)} offset:{L_XN+256*i}")
    lds_signal(F_XN)
    a.label("L_H23b")
    if lay2: hconst()
    stamp(1)
    make_tag()
    if layout: a("s_branch L_qwait"); section("rest")
    a.label("L_qwait")
    lds_wait(F_P1, 1, sleep=2)
    a("; ---- helpers: gather q (one head each)"); a.label("L_qgather")
    stamp(3)
    a("v_lshlrev_b32 v1, 4, v0")
    a(f"s_lshl_b32 s{sT1}, s{sKVH}, 2"); a(f"s_add_u32 s{sT1}, s{sT1}, s{sB}"); a(f"s_lshl_b32 s{sT1}, s{sT1}, 2")
    a(f"s_add_u32 s{sT1}, s{sT1}, s{sWAVE}"); a(f"s_lshl_b32 s{sT1}, s{sT1}, 12"); a(f"s_add_u32 s{sT1}, s{sT1}, {QP}")
    a("v_and_b32 v5, 31, v0"); a("v_mul_u32_u24 v33, 6, v5"); a("v_lshrrev_b32 v5, 5, v0"); a("v_lshl_add_u32 v33, v5, 7, v33")
    a(f"s_lshl_b32 s{sT3}, s{sWAVE}, 8"); a(f"v_add_u32 v33, s{sT3}, v33")
    a(f"s_mov_b32 s{sMIX}, 0")
    a("s_mov_b32 exec_lo, 0x003fffff"); a("s_mov_b32 exec_hi, 0x003fffff")
    L = lab("poll"); a.label(L)
    for u in range(4): a(f"buffer_load_dwordx4 {vr(WD+4*u,4)}, v1, {WSRD}, s{sT1} offen offset:{1024*u} sc1")
    a("s_waitcnt vmcnt(0)")
    for u in range(4): a(f"v_xor_b32 v{WD+4*u+3}, s{sTAG}, v{WD+4*u+3}")
    a(f"v_or3_b32 v5, v{WD+3}, v{WD+7}, v{WD+11}"); a(f"v_or_b32 v5, v5, v{WD+15}")
    a("v_cmp_ne_u32 vcc, 0, v5")
    if qpl:
        def need_check(done):
            a(f"global_load_dword v5, v34, s[{sDBG}:{sDBG+1}] sc1"); a("s_waitcnt vmcnt(0)"); a(f"v_readfirstlane_b32 s{sT0}, v5")
            a(f"s_cmp_eq_u32 s{sT0}, 0"); a(f"s_cbranch_scc1 {done}")
            qp_store(" sc1")
        a("s_cbranch_vccz L_qok")
        a(f"s_mov_b64 s[{sM1}:{sM1+1}], vcc"); a("s_mov_b64 exec, -1")
        a(f"s_lshl_b32 s{sT0}, s{sKVH}, 2"); a(f"v_mov_b32 v34, s{sT0}")
        a(f"s_add_u32 s{sMIX}, s{sMIX}, 1"); a(f"s_cmp_lt_u32 s{sMIX}, 3"); a("s_cbranch_scc1 L_qagain")
        a("s_mov_b64 exec, 1"); a(f"global_store_dword v34, v{vONE}, s[{sDBG}:{sDBG+1}] sc1"); a("s_mov_b64 exec, -1")
        a(f"s_cmp_lg_u32 s{sWAVE}, 0"); a("s_cbranch_scc1 L_qagain")
        qp_store(" sc1")
        a.label("L_qagain")
        a(f"s_mov_b64 exec, s[{sM1}:{sM1+1}]")
        a("s_sleep 2"); a(f"s_sub_u32 s{sCNT}, s{sCNT}, 1"); a(f"s_cbranch_scc0 {L}"); a("s_endpgm")
        a.label("L_qok")
    else: retry(L, sleep=2, masked=True)
    if fast:
        a("s_mov_b32 exec_lo, 0x00200000"); a("s_mov_b32 exec_hi, 0x00200000")
        for u in range(4): a(f"v_xor_b32 v{BT+u}, s{sXCC}, v{WD+4*u+1}")
        a(f"v_or3_b32 v5, v{BT}, v{BT+1}, v{BT+2}"); a(f"v_or_b32 v5, v5, v{BT+3}")
        a("v_cmp_ne_u32 vcc, 0, v5"); a("s_cbranch_vccz L_uniform")
        lds_signal(F_MIX)
        a.label("L_uniform")
    a("s_mov_b32 exec_lo, 0x003fffff"); a("s_mov_b32 exec_hi, 0x003fffff")
    for k in range(3):
        a(f"v_add_f32 v{WD+k}, v{WD+k}, v{WD+4+k}"); a(f"v_add_f32 v{WD+8+k}, v{WD+8+k}, v{WD+12+k}")
    for k in range(3): a(f"v_add_f32 v{WD+k}, v{WD+k}, v{WD+8+k}")
    a(f"v_cvt_pk_bf16_f32 v{WD}, v{WD}, v{WD+1}"); a(f"v_cvt_pk_bf16_f32 v{WD+2}, v{WD+2}, v{WD+2}")
    a(f"ds_write_b16 v33, v{WD} offset:{L_Q}")
    a("s_mov_b32 exec_lo, 0x001fffff"); a("s_mov_b32 exec_hi, 0x001fffff")
    a(f"ds_write_b16_d16_hi v33, v{WD} offset:{L_Q+2}"); a(f"ds_write_b16 v33, v{WD+2} offset:{L_Q+4}")
    lds_signal(F_Q)
    stamp(4)
    a(f"s_cmp_eq_u32 s{sWAVE}, 2"); a("s_cbranch_scc1 L_H2b")
    a(f"s_cmp_eq_u32 s{sWAVE}, 3"); a("s_cbranch_scc1 L_H3b")
    a("v_lshlrev_b32 v1, 13, v2"); a("v_lshl_add_u32 v1, v3, 4, v1")
    a(f"s_cmp_eq_u32 s{sWAVE}, 1"); a("s_cbranch_scc1 L_H1b")
    if qpl:
        a(f"s_lshl_b32 s{sT0}, s{sKVH}, 2"); a(f"v_mov_b32 v34, s{sT0}"); a(f"s_mov_b32 s{sT1}, 0")
        a.label("L_watch")
        a(f"ds_read_b32 v5, v{vZ} offset:{F_Q*4}"); a("s_waitcnt lgkmcnt(0)"); a(f"v_readfirstlane_b32 s{sT0}, v5")
        a(f"s_cmp_ge_u32 s{sT0}, 4"); a("s_cbranch_scc1 L_wdone")
        a("s_sleep 4"); a(f"s_add_u32 s{sT1}, s{sT1}, 1"); a(f"s_and_b32 s{sT0}, s{sT1}, 31"); a(f"s_cbranch_scc1 L_wnext")
        need_check("L_wnext")
        a.label("L_wnext")
        a(f"s_sub_u32 s{sCNT}, s{sCNT}, 1"); a("s_cbranch_scc0 L_watch"); a("s_endpgm")
        a.label("L_wdone")
        read_mix(5)
        a(f"s_cmp_eq_u32 s{sMIX}, 0"); a("s_cbranch_scc1 L_proj")
        qp_store(" sc1")
    a("s_branch L_proj")
    a.label("L_H1b")
    assert opt and h1clr
    lds_wait(F_Q, 4, sleep=2)
    read_mix(5)
    a(f"s_cmp_eq_u32 s{sMIX}, 0"); a("s_cbranch_scc1 L_h1u")
    a(f"buffer_store_dwordx4 {vr(XA,4)}, v166, {WSRD}, s{sO} offen sc1")
    a(f"buffer_store_dwordx4 {vr(XA+4,4)}, v166, {WSRD}, s{sO+1} offen sc1")
    a.label("L_h1u")
    a("s_waitcnt vmcnt(0)")
    lds_signal(F_CLR)
    if late_hp and not h1clr:
        lds_wait(F_Q, 4, sleep=2)
        read_mix(5)
        a("v_lshlrev_b32 v166, 4, v0")
        group_store(f"buffer_store_dwordx4 {vr(XA,4)}, v166, {WSRD}, s{sO} offen")
    a("; ---- waves 0/1: output projection"); a.label("L_proj")
    assert combine
    BW, G, SU, AA = 104, 72, 80, 96
    srd(sSRD, sWO, 0x400000)
    a(f"s_lshl_b32 s{sDB}, s{sHF}, 1"); a(f"s_add_u32 s{sDB}, s{sDB}, s{sWAVE}")
    a(f"s_lshl_b32 s{sO}, s{sDB}, 15"); a(f"s_lshl_b32 s{sT2}, s{sCQ}, 8"); a(f"s_add_u32 s{sO}, s{sO}, s{sT2}"); a(f"s_add_u32 s{sO+1}, s{sO}, 4096")
    a("v_bfe_u32 v4, v0, 2, 2"); a("v_and_b32 v5, 3, v0")
    a("v_lshlrev_b32 v137, 10, v4"); a("v_lshl_add_u32 v137, v2, 7, v137")
    a(f"s_lshl_b32 s{sO+2}, s{sKVH}, 12"); a(f"s_bfe_u32 s{sT2}, s{sHF}, 0x10002"); a(f"s_lshl_b32 s{sT2}, s{sT2}, 4")
    a(f"s_add_u32 s{sO+2}, s{sO+2}, s{sT2}"); a(f"s_add_u32 s{sO+2}, s{sO+2}, {ST}")
    a("v_lshlrev_b32 v100, 13, v4"); a("v_lshl_add_u32 v100, v2, 10, v100"); a("v_lshl_add_u32 v100, v5, 4, v100")
    a(f"s_lshl_b32 s{sT3}, s{sKVH}, 15"); a(f"s_and_b32 s{sT4}, s{sDB}, 15"); a(f"s_lshl_b32 s{sT4}, s{sT4}, 6")
    a(f"s_add_u32 s{sT3}, s{sT3}, s{sT4}"); a(f"s_add_u32 s{sT3}, s{sT3}, {OP}"); a(f"s_add_u32 s{sT4}, s{sT3}, 4096")
    a(f"s_lshl_b32 s{sT1}, s{sWAVE}, 8"); a(f"s_add_u32 s{sT1}, s{sT1}, {L_AO}")
    a("v_lshlrev_b32 v101, 6, v4"); a("v_lshl_add_u32 v101, v5, 4, v101"); a("v_lshl_add_u32 v101, v2, 2, v101"); a(f"v_add_u32 v101, s{sT1}, v101")
    a("v_lshlrev_b32 v5, 6, v5"); a("v_lshl_add_u32 v5, v2, 4, v5"); a(f"v_add_u32 v5, s{sT1}, v5"); a(f"v_mov_b32 v4, {L_ZERO}")
    for g in range(4): a(f"v_cndmask_b32 v{AA+g}, v4, v5, s[{sM+2*g}:{sM+2*g+1}]")
    a("v_lshlrev_b32 v138, 4, v0")
    if numa:
        a(f"s_lshl_b32 s{sT2}, s{sCQ}, 18"); a(f"s_lshr_b32 s{sT1}, s{sDB}, 3"); a(f"s_lshl_b32 s{sT1}, s{sT1}, 14"); a(f"s_add_u32 s{sT2}, s{sT2}, s{sT1}")
        a(f"s_and_b32 s{sT1}, s{sDB}, 7"); a(f"s_lshl_b32 s{sT1}, s{sT1}, 10")
    else:
        a(f"s_lshl_b32 s{sT2}, s{sCQ}, 17"); a(f"s_lshl_b32 s{sT1}, s{sDB}, 10")
    a(f"s_add_u32 s{sT5}, s{sT1}, s{sT2}"); a(f"s_add_u32 s{sT5}, s{sT5}, {FP}"); a(f"s_add_u32 s{sO+3}, s{sT5}, 8192")
    a(f"s_lshl_b32 s{sT1}, s{sWAVE}, 10"); a(f"v_add_u32 v103, s{sT1}, v138"); a(f"v_xor_b32 v136, 1024, v103")
    a(f"v_mov_b32 v102, s{sHI}")
    if own_touch and "fp" in touch: a(f"buffer_load_dwordx4 {vr(G,4)}, v138, {WSRD}, s{sT5} offen")
    if "wo" in touch:
        a("s_mov_b64 exec, 1"); a(f"buffer_load_dword v139, v{vZ}, s[{sSRD}:{sSRD+3}], s{sO} offen nt"); a("s_mov_b64 exec, -1")
    lds_wait(F_FW, 1, sleep=4)
    if wo_sig is not None: lds_wait(F_WO, 1, sleep=1)
    if stfirst:
        a("s_setprio 3")
        def st_loads():
            for u in range(2): a(f"buffer_load_dwordx4 {vr(144+4*u,4)}, v137, {WSRD}, s{sO+2} offen offset:{512*u} sc1")
        def op_loads():
            for u in range(2): a(f"buffer_load_dwordx4 {vr(G+4*u,4)}, v100, {WSRD}, s{sT3+u} offen sc1")
        def weights():
            E = lab("ev")
            a(f"s_bitcmp1_b32 s{sHF}, 1"); a(f"s_cbranch_scc0 {E}")
            for u in range(2):
                a(f"v_mov_b32 v{144+4*u}, v{146+4*u}"); a(f"v_mov_b32 v{145+4*u}, v{147+4*u}")
            a.label(E)
            a("v_max_f32 v146, v144, v148")
            allreduce("v_max_f32", 146, 147, ['p16', 'p32'])
            a(f"s_mov_b32 s{sT0}, 0x3fb8aa3b")
            a("v_sub_f32 v144, v144, v146"); a("v_sub_f32 v148, v148, v146")
            a(f"v_mul_f32 v144, s{sT0}, v144"); a(f"v_mul_f32 v148, s{sT0}, v148")
            a("v_exp_f32 v144, v144"); a("v_exp_f32 v148, v148")
            a("v_mul_f32 v146, v144, v145"); a("v_fmac_f32 v146, v148, v149")
            allreduce("v_add_f32", 146, 147, ['p16', 'p32'])
            a("v_rcp_f32 v146, v146")
            a("v_mul_f32 v140, v144, v146"); a("v_mul_f32 v142, v148, v146")
            a("v_mov_b32 v141, v140"); a("v_mov_b32 v143, v142")
        st_loads()
        for t in range(8):
            a(f"buffer_load_dwordx4 {vr(WD+4*t,4)}, v1, s[{sSRD}:{sSRD+3}], s{sO + (t >> 2)} offen offset:{(t&3)*1024} nt")
        lds_wait(F_MLP, 1, sleep=1)
        for i in range(4): a(f"v_mov_b32 v{SU+i}, 0")
        a(f"ds_read_b128 {vr(SU+4,4)}, v103 offset:{L_M}")
        a("s_waitcnt lgkmcnt(0)")
        a(f"s_cmp_eq_u32 s{sWAVE}, 1"); a(f"s_cselect_b64 vcc, -1, 0")
        for i in range(4):
            a(f"v_cndmask_b32 v{ACC+i}, v{SU+4+i}, v{SU+i}, vcc"); a(f"v_cndmask_b32 v{ACC+4+i}, v{SU+i}, v{SU+4+i}, vcc")
        a("s_waitcnt vmcnt(8)")
        untag(144, 8, 5)
        a(f"s_mov_b64 s[{sM1}:{sM1+1}], vcc")
        a("s_cbranch_vccnz L_stmiss")
        op_loads()
        weights()
        a("s_branch L_perms")
        a.label("L_stmiss")
        a("s_mov_b64 exec, vcc")
        st_loads()
        a("s_mov_b64 exec, -1")
        a.label("L_perms")
        for m in range(4):
            a(f"s_waitcnt vmcnt({8-2*m})")
            for e in range(8):
                a(f"v_perm_b32 v{BW+4*e+m}, v{WD+4*(2*m+1)+(e>>1)}, v{WD+4*(2*m)+(e>>1)}, s{sSELHI if e & 1 else sSELLO}")
        a(f"s_cmp_eq_u64 s[{sM1}:{sM1+1}], 0"); a("s_cbranch_scc1 L_stok")
        a(f"s_mov_b64 exec, s[{sM1}:{sM1+1}]")
        a("s_branch L_stchk")
        L = lab("poll"); a.label(L)
        st_loads()
        a.label("L_stchk")
        a("s_waitcnt vmcnt(0)")
        untag(144, 8, 5)
        retry(L, sleep=4, masked=True)
        op_loads()
        weights()
        a.label("L_stok")
    else:
        a("s_setprio 3")
        for t in range(8):
            a(f"buffer_load_dwordx4 {vr(WD+4*t,4)}, v1, s[{sSRD}:{sSRD+3}], s{sO + (t >> 2)} offen offset:{(t&3)*1024} nt")
        for u in range(2): a(f"buffer_load_dwordx4 {vr(144+4*u,4)}, v137, {WSRD}, s{sO+2} offen offset:{512*u} sc1")
        if w2late:
            if w2_sig is None: lds_signal(F_W2)
            for i in range(8): a(f"v_mov_b32 v{ACC+i}, 0")
        else:
            lds_wait(F_MLP, 1, sleep=1)
            for i in range(4): a(f"v_mov_b32 v{SU+i}, 0")
            a(f"ds_read_b128 {vr(SU+4,4)}, v103 offset:{L_M}")
            a("s_waitcnt lgkmcnt(0)")
            a(f"s_cmp_eq_u32 s{sWAVE}, 1"); a(f"s_cselect_b64 vcc, -1, 0")
            for i in range(4):
                a(f"v_cndmask_b32 v{ACC+i}, v{SU+4+i}, v{SU+i}, vcc"); a(f"v_cndmask_b32 v{ACC+4+i}, v{SU+i}, v{SU+4+i}, vcc")
        for m in range(4):
            a(f"s_waitcnt vmcnt({8-2*m})")
            for e in range(8):
                a(f"v_perm_b32 v{BW+4*e+m}, v{WD+4*(2*m+1)+(e>>1)}, v{WD+4*(2*m)+(e>>1)}, s{sSELHI if e & 1 else sSELLO}")
        a("s_branch L_stchk")
        L = lab("poll"); a.label(L)
        for u in range(2): a(f"buffer_load_dwordx4 {vr(144+4*u,4)}, v137, {WSRD}, s{sO+2} offen offset:{512*u} sc1")
        a.label("L_stchk")
        a("s_waitcnt vmcnt(0)")
        untag(144, 8, 5)
        retry(L, sleep=4, masked=True)
        for u in range(2): a(f"buffer_load_dwordx4 {vr(G+4*u,4)}, v100, {WSRD}, s{sT3+u} offen sc1")
        a(f"s_bitcmp1_b32 s{sHF}, 1"); a("s_cbranch_scc0 L_evenh")
        for u in range(2):
            a(f"v_mov_b32 v{144+4*u}, v{146+4*u}"); a(f"v_mov_b32 v{145+4*u}, v{147+4*u}")
        a.label("L_evenh")
        a("v_max_f32 v146, v144, v148")
        allreduce("v_max_f32", 146, 147, ['p16', 'p32'])
        a(f"s_mov_b32 s{sT0}, 0x3fb8aa3b")
        a("v_sub_f32 v144, v144, v146"); a("v_sub_f32 v148, v148, v146")
        a(f"v_mul_f32 v144, s{sT0}, v144"); a(f"v_mul_f32 v148, s{sT0}, v148")
        a("v_exp_f32 v144, v144"); a("v_exp_f32 v148, v148")
        a("v_mul_f32 v146, v144, v145"); a("v_fmac_f32 v146, v148, v149")
        allreduce("v_add_f32", 146, 147, ['p16', 'p32'])
        a("v_rcp_f32 v146, v146")
        a("v_mul_f32 v140, v144, v146"); a("v_mul_f32 v142, v148, v146")
        a("v_mov_b32 v141, v140"); a("v_mov_b32 v143, v142")
    stamp(3)
    a("s_branch L_opchk")
    L = lab("poll"); a.label(L)
    for u in range(2): a(f"buffer_load_dwordx4 {vr(G+4*u,4)}, v100, {WSRD}, s{sT3+u} offen sc1")
    a.label("L_opchk")
    a("s_waitcnt vmcnt(0)")
    a(f"v_max3_u32 v4, v{G}, v{G+1}, v{G+2}"); a(f"v_max3_u32 v5, v{G+3}, v{G+4}, v{G+5}")
    a(f"v_max3_u32 v4, v4, v{G+6}, v{G+7}"); a("v_max_u32 v4, v4, v5")
    a("v_cmp_eq_u32 vcc, -1, v4")
    retry(L, masked=True)
    stamp(6)
    for i in range(4):
        a(f"v_lshlrev_b32 v{SU+2*i}, 16, v{G+i}"); a(f"v_and_b32 v{SU+2*i+1}, 0xffff0000, v{G+i}")
    for i in range(4):
        a(f"v_lshlrev_b32 v{SU+8+2*i}, 16, v{G+4+i}"); a(f"v_and_b32 v{SU+8+2*i+1}, 0xffff0000, v{G+4+i}")
        a(f"v_pk_mul_f32 {vr(SU+2*i,2)}, {vr(SU+2*i,2)}, v[140:141]")
    for i in range(4): a(f"v_pk_fma_f32 {vr(SU+2*i,2)}, {vr(SU+8+2*i,2)}, v[142:143], {vr(SU+2*i,2)}")
    reduce8to2(SU)
    a(f"v_cvt_pk_bf16_f32 v5, v{SU}, v{SU+1}")
    a("ds_write_b32 v101, v5")
    for g in range(4): a(f"ds_read_b128 {vr(AV+4*g,4)}, v{AA+g}")
    a(f"s_cmp_eq_u32 s{sWAVE}, 1"); a("s_cbranch_scc1 L_keep1")
    for keep in range(2):
        if keep == 1: a.label("L_keep1")
        give = 1 - keep
        for n in range(8):
            ac = give if n < 4 else keep
            g = n & 3
            if n < 4: a(f"s_waitcnt lgkmcnt({3-g})")
            a(f"v_mfma_f32_16x16x32_bf16 {vr(ACC+4*ac,4)}, {vr(AV+4*g,4)}, {vr(BW+4*(4*ac+g),4)}, {vr(ACC+4*ac,4)}")
        for i in range(4): a(f"v_min_u32 v{ACC+4*give+i}, 0xfffffffe, v{ACC+4*give+i}")
        a(f"ds_write_b128 v136, {vr(ACC+4*give,4)} offset:{L_X}")
        L = lab("xp"); a.label(L)
        a(f"ds_read_b128 {vr(G,4)}, v103 offset:{L_X}")
        if w2late: a(f"ds_read_b128 {vr(G+4,4)}, v103 offset:{L_M}")
        a("s_waitcnt lgkmcnt(0)")
        if w2late:
            a(f"v_max3_u32 v4, v{G}, v{G+1}, v{G+2}"); a(f"v_max3_u32 v5, v{G+3}, v{G+4}, v{G+5}"); a(f"v_max3_u32 v4, v4, v{G+6}, v{G+7}"); a("v_max_u32 v4, v4, v5")
        else:
            a(f"v_max3_u32 v4, v{G}, v{G+1}, v{G+2}"); a(f"v_max_u32 v4, v4, v{G+3}")
        a("v_cmp_eq_u32 vcc, -1, v4")
        retry(L)
        if w2late:
            for i in (0, 2): a(f"v_pk_add_f32 {vr(G+i,2)}, {vr(G+4+i,2)}, {vr(G+i,2)}")
        for i in (0, 2): a(f"v_pk_add_f32 {vr(G+i,2)}, {vr(ACC+4*keep+i,2)}, {vr(G+i,2)}")
        for i in range(4): a(f"v_and_or_b32 v{G+i}, v{G+i}, v102, s{sTB+(i&3)}")
        a(f"buffer_store_dwordx4 {vr(G,4)}, v138, {WSRD}, s{sT5} offen sc1")
        if numa: a(f"buffer_store_dwordx4 {vr(G,4)}, v138, {WSRD}, s{sO+3} offen sc1")
        lds_signal(F_FP)
        stamp(7)
        finish_wave()

    a("; ---- wave 3: workgroup statistics"); a.label("L_H3b")
    a("v_and_b32 v4, 7, v0"); a("v_lshlrev_b32 v1, 4, v4"); a("v_lshlrev_b32 v4, 3, v4")
    a(f"s_lshl_b32 s{sT1}, s{sKVH}, 5"); a(f"s_add_u32 s{sT1}, s{sT1}, s{sJ}"); a(f"s_lshl_b32 s{sT1}, s{sT1}, 7"); a(f"s_add_u32 s{sT1}, s{sT1}, {ST}")
    lds_wait(F_STAT, 4, sleep=2)
    if fast: read_mix(5)
    if lateclr: lds_wait(F_CLR, 1, sleep=2)
    stamp(5)
    a(f"ds_read_b128 v[8:11], v1 offset:{L_ST}")
    a("s_waitcnt lgkmcnt(0)")
    a("v_mov_b32 v12, v8"); a("v_mov_b32 v14, v10")
    for x in (12, 14): allreduce("v_max_f32", x, 16, ['q2', 'r4'])
    a(f"s_mov_b32 s{sT0}, 0x3fb8aa3b")
    a("v_sub_f32 v8, v8, v12"); a("v_sub_f32 v10, v10, v14")
    a(f"v_mul_f32 v8, s{sT0}, v8"); a(f"v_mul_f32 v10, s{sT0}, v10")
    a("v_exp_f32 v16, v8"); a("v_exp_f32 v17, v10")
    a("v_mul_f32 v13, v16, v9"); a("v_mul_f32 v15, v17, v11")
    a(f"ds_write_b64 v4, v[16:17] offset:{L_FW}")
    for x in (13, 15): allreduce("v_add_f32", x, 18, ['q2', 'r4'])
    bytetag(12, 4)
    a("s_mov_b64 exec, 3")
    group_store(f"buffer_store_dwordx4 v[12:15], v1, {WSRD}, s{sT1} offen")
    lds_signal(F_FW)
    if two: a("s_branch L_final")
    else:
        stamp(6); stamp(7)
        finish_wave()

    a("; ---- wave 2: MLP second half"); a.label("L_H2b")
    if lateclr and not h1clr:
        a(f"s_lshl_b32 s{sT1}, s{sKVH}, 5"); a(f"s_add_u32 s{sT1}, s{sT1}, s{sJ}"); a(f"s_lshl_b32 s{sT2}, s{sT1}, 10"); a(f"s_add_u32 s{sT2}, s{sT2}, {OP}")
        for i in range(4): a(f"v_mov_b32 v{BT+i}, -1")
        lds_wait(F_Q, 4, sleep=2)
        read_mix(5)
        group_store(f"buffer_store_dwordx4 {vr(BT,4)}, v1, {WSRD}, s{sT2} offen")
    assert lateclr
    a("v_lshlrev_b32 v1, 13, v2"); a("v_lshl_add_u32 v1, v3, 4, v1")
    HG = WD + 32
    srd(sSRD, sW2, 1792 * 1024)
    a("v_cmp_eq_u32 vcc, 3, v2"); a("v_mov_b32 v5, 0x40000000"); a("v_cndmask_b32 v5, v1, v5, vcc")
    a(f"s_mul_i32 s{sT1}, s{sHF}, {28*1024}"); a(f"s_lshl_b32 s{sT2}, s{sCQ}, 8"); a(f"s_add_u32 s{sT1}, s{sT1}, s{sT2}"); a(f"s_add_u32 s{sT2}, s{sT1}, 4096")
    W2S = 64
    def w2_loads(srd_, o0, o1, va, vb):
        for t in range(8):
            a(f"buffer_load_dwordx4 {vr(104+4*t if w2late else WD+4*t,4)}, v{va if t < 4 else vb}, s[{srd_}:{srd_+3}], s{o0 if t < 4 else o1} offen offset:{(t&3)*1024} nt")
    if w2late:
        srd(W2S, sW2, 1792 * 1024); a(f"s_mov_b32 s{W2S+4}, s{sT1}"); a(f"s_mov_b32 s{W2S+5}, s{sT2}"); a("v_mov_b32 v138, v1"); a("v_mov_b32 v139, v5")
    else: w2_loads(sSRD, sT1, sT2, 1, 5)
    a("v_lshrrev_b32 v4, 3, v0"); a("v_lshlrev_b32 v4, 10, v4")
    a("v_and_b32 v33, 7, v0"); a("v_min_u32 v5, 6, v33"); a("v_lshl_add_u32 v4, v5, 4, v4")
    a(f"s_lshr_b32 s{sT1}, s{sHF}, 1"); a(f"s_lshl_b32 s{sT1}, s{sT1}, 13"); a(f"s_and_b32 s{sT2}, s{sHF}, 1"); a(f"s_mul_i32 s{sT2}, s{sT2}, 112")
    a(f"s_add_u32 s{sT1}, s{sT1}, s{sT2}"); a(f"s_add_u32 s{sT1}, s{sT1}, {HP}")
    if not h1clr:
        a("s_waitcnt vmcnt(8)")
        lds_signal(F_CLR)
    L = lab("poll"); a.label(L)
    for u in range(4): a(f"buffer_load_dwordx4 {vr(HG+16+4*u,4)}, v4, {WSRD}, s{sT1} offen offset:{256*u} sc1")
    a("s_waitcnt vmcnt(0)")
    untag(HG + 16, 16, BT)
    retry(L, sleep=2, masked=True)
    for b in range(2):
        for i in range(4): a(f"v_mov_b32 v{HG+8*b+i}, v{HG+16+4*b+i}")
    for i in range(4): a(f"v_mov_b32 v{HG+16+i}, v{HG+24+i}")
    for i in range(4): a(f"v_mov_b32 v{HG+24+i}, v{HG+28+i}")
    for b in range(2):
        for i in range(4): a(f"v_permlane32_swap_b32 v{HG+8*b+i}, v{HG+8*(b+2)+i}")
    for b in range(2):
        for i in (0, 2): a(f"v_pk_add_f32 {vr(HG+8*b+i,2)}, {vr(HG+8*b+i,2)}, {vr(HG+8*(b+2)+i,2)}")
    for i in range(4): a(f"v_permlane16_swap_b32 v{HG+i}, v{HG+8+i}")
    for i in (0, 2): a(f"v_pk_add_f32 {vr(HG+i,2)}, {vr(HG+i,2)}, {vr(HG+8+i,2)}")
    for i in range(4): a(f"v_add_f32_dpp v{HG+i}, v{HG+i}, v{HG+i} row_ror:8 {DPPM}")
    for i in range(2): a(f"v_cvt_pk_bf16_f32 v{HG+8+i}, v{HG+2*i}, v{HG+2*i+1}")
    for i in range(2):
        a(f"v_lshlrev_b32 v{HG+2*i}, 16, v{HG+8+i}"); a(f"v_and_b32 v{HG+2*i+1}, 0xffff0000, v{HG+8+i}")
    a(f"s_mov_b32 s{sT0}, 0xbfb8aa3b")
    for i in range(4): a(f"v_mul_f32 v{HG+8+i}, s{sT0}, v{HG+i}")
    for i in range(4): a(f"v_exp_f32 v{HG+8+i}, v{HG+8+i}")
    for i in range(4): a(f"v_add_f32 v{HG+8+i}, 1.0, v{HG+8+i}")
    for i in range(4): a(f"v_rcp_f32 v{HG+8+i}, v{HG+8+i}")
    for i in range(4): a(f"v_mul_f32 v{HG+i}, v{HG+i}, v{HG+8+i}")
    for i in range(2): a(f"v_cvt_pk_bf16_f32 v{HG+8+i}, v{HG+2*i}, v{HG+2*i+1}")
    a("v_cmp_eq_u32 vcc, 7, v33")
    for i in range(2): a(f"v_cndmask_b32 v{HG+8+i}, v{HG+8+i}, 0, vcc")
    a("v_lshlrev_b32 v4, 6, v2"); a("v_lshl_add_u32 v4, v33, 3, v4")
    a(f"ds_write_b64 v4, {vr(HG+8,2)} offset:{L_AH}")
    a("v_and_b32 v5, 3, v0"); a("v_lshlrev_b32 v5, 6, v5"); a("v_lshl_add_u32 v5, v2, 4, v5"); a(f"v_add_u32 v5, {L_AH}, v5"); a(f"v_mov_b32 v4, {L_ZERO}")
    for g in range(4): a(f"v_cndmask_b32 v{HG+g}, v4, v5, s[{sM+2*g}:{sM+2*g+1}]")
    for g in range(4): a(f"ds_read_b128 {vr(AV+4*g,4)}, v{HG+g}")
    a("s_waitcnt lgkmcnt(0)")
    def w2_finish():
        if w2late:
            lds_wait(F_W2, 2 if w2_sig is None else 1, sleep=1)
            w2_loads(W2S, W2S+4, W2S+5, 138, 139)
            if tlate:
                for u in range(2): a(f"buffer_load_dwordx4 {vr(56+4*u,4)}, v1, {WSRD}, s{(sT5, 54)[u]} offen")
            PB, D = 72, 104
            for m in range(4):
                a(f"s_waitcnt vmcnt({(8 if tlate else 6)-2*m})")
                for e in range(8):
                    a(f"v_perm_b32 v{PB+4*e+m}, v{D+4*(2*m+1)+(e>>1)}, v{D+4*(2*m)+(e>>1)}, s{sSELHI if e & 1 else sSELLO}")
            seen = set()
            for e in (0, 4, 1, 5, 2, 6, 3, 7):
                ac, g = emap(e, 'A')
                c = vr(ACC+4*ac, 4) if ac in seen else "0"; seen.add(ac)
                a(f"v_mfma_f32_16x16x32_bf16 {vr(ACC+4*ac,4)}, {vr(AV+4*g,4)}, {vr(PB+4*e,4)}, {c}")
            for i in range(8): a(f"v_min_u32 v{ACC+i}, 0xfffffffe, v{ACC+i}")
        else: block(WD, AV, BT, ACC, 'A', first=True)
        a("v_lshlrev_b32 v4, 4, v0")
        for i in range(2): a(f"ds_write_b128 v4, {vr(ACC+4*i,4)} offset:{L_M+1024*i}")
        if not w2late: lds_signal(F_MLP)
        stamp(2)
    if not w2late: w2_finish()
    a("; ---- wave 2: final reduction"); a.label("L_final")
    I = 1 << fk
    nparts = 64 if combine else 128
    nld = nparts * I // 64
    if fk > 1:
        a(f"s_cmp_lt_u32 s{sJ}, {64 // I}"); a("s_cbranch_scc1 L_fin")
        stamp(5); stamp(6); stamp(7)
        finish_wave()
        a.label("L_fin")
    assert fk == 1
    a(f"s_lshr_b32 s{sT0}, s{sKVH}, 1"); a(f"s_lshr_b32 s{sT1}, s{sJ}, 4")
    a(f"s_bfe_u32 s{sT2}, s{sJ}, 0x20002"); a(f"s_lshl_b32 s{sT2}, s{sT2}, 4"); a(f"s_and_b32 s{sT3}, s{sKVH}, 1"); a(f"s_lshl_b32 s{sT3}, s{sT3}, 3")
    a(f"s_add_u32 s{sT2}, s{sT2}, s{sT3}"); a(f"s_lshl_b32 s{sT3}, s{sCQ}, 1"); a(f"s_add_u32 s{sT2}, s{sT2}, s{sT3}")
    a(f"v_and_b32 v4, 1, v0"); a(f"v_add_u32 v4, s{sT2}, v4")
    if numa:
        a("v_lshrrev_b32 v5, 3, v0"); a("v_lshlrev_b32 v5, 14, v5"); a("v_bfe_u32 v1, v0, 1, 2"); a("v_lshl_add_u32 v5, v1, 11, v5"); a("v_lshl_add_u32 v1, v4, 4, v5")
    else:
        a(f"v_lshrrev_b32 v5, {fk}, v0"); a("v_lshlrev_b32 v5, 11, v5"); a("v_lshl_add_u32 v1, v4, 4, v5")
    a(f"s_lshl_b32 s{sT2}, s{sT0}, {18 if numa else 17}"); a(f"s_lshl_b32 s{sT3}, s{sT1}, 10"); a(f"s_add_u32 s{sT2}, s{sT2}, s{sT3}"); a(f"s_add_u32 s{sT5}, s{sT2}, {FP}")
    sso = [sT5] + list(range(54, 62))
    for u in range(1, nld): a(f"s_add_u32 s{sso[u]}, s{sT5}, {(2 if numa else 1)*2048*(64//I)*u}")
    if numa:
        for u in range(2): a(f"s_add_u32 s{sso[2+u]}, s{sso[u]}, 8192")
    a("v_and_b32 v5, 15, v4"); a("v_lshlrev_b32 v5, 3, v5"); a("v_lshrrev_b32 v4, 4, v4"); a("v_add_u32 v4, v4, v5")
    a(f"s_lshl_b32 s{sT0}, s{sT0}, 7"); a(f"s_lshl_b32 s{sT1}, s{sT1}, 2"); a(f"s_add_u32 s{sT0}, s{sT0}, s{sT1}")
    a(f"v_add_u32 v4, s{sT0}, v4"); a("v_lshlrev_b32 v4, 1, v4"); a("v_lshl_add_u32 v30, v2, 10, v4")
    srd(sSRD, sX, 4096); srd(sSRD2, sOUT, 4096)
    a(f"buffer_load_ushort v31, v30, s[{sSRD}:{sSRD+3}], 0 offen")
    if "out" in touch: a(f"buffer_load_ushort v32, v30, s[{sSRD2}:{sSRD2+3}], 0 offen")
    if "fp" in touch and not tlate and not own_touch:
        if two: a(f"s_cmp_eq_u32 s{sWAVE}, 3"); a("s_cbranch_scc1 L_nofp")
        for u in range(4 if numa else 2): a(f"buffer_load_dwordx4 {vr(56+4*u,4)}, v1, {WSRD}, s{sso[u]} offen")
    if two and "fp" in touch: a.label("L_nofp")
    a(f"v_mov_b32 v29, s{sTAG}")
    a("s_setprio 3")
    assert w2late
    w2_finish()
    a("v_lshlrev_b32 v31, 16, v31")
    lds_wait(F_FP, 2, sleep=1)
    stamp(5)
    FD = 40
    if pipe2:
        assert nld == 2
        GA, GB, sMISS = 56, 64, sM1
        def issue(Rg):
            cp = 2 * (((Rg - 56) // 8) & 1) if numa else 0
            for u in range(nld): a(f"buffer_load_dwordx4 {vr(Rg+4*u,4)}, v1, {WSRD}, s{sso[cp+u]} offen sc1")
        def take(Rg, done):
            a(f"s_waitcnt vmcnt({2*(depth-1)})")
            untag(Rg, 8, 8)
            a(f"s_andn2_b64 exec, exec, vcc")
            for i in range(8): a(f"v_mov_b32 v{FD+i}, v{Rg+i}")
            a(f"s_mov_b64 exec, vcc")
            a(f"s_cbranch_vccz {done}")
            issue(Rg)
        LP, DN = lab("poll"), lab("d")
        sets = [56 + 8*i for i in range(depth)]
        if two:
            a(f"s_cmp_lg_u32 s{sWAVE}, 3"); a("s_cbranch_scc1 L_nst"); a(f"s_sleep {max(stag // 2, 1)}"); a.label("L_nst")
        for i, Rg in enumerate(sets):
            if i and stag: a(f"s_sleep {stag}")
            issue(Rg)
        a.label(LP)
        for Rg in sets: take(Rg, DN)
        a(f"s_sub_u32 s{sCNT}, s{sCNT}, 1"); a(f"s_cbranch_scc0 {LP}"); a("s_endpgm")
        a.label(DN)
        a("s_mov_b64 exec, -1")
    else:
        if first_plain:
            for u in range(nld): a(f"buffer_load_dwordx4 {vr(FD+4*u,4)}, v1, {WSRD}, s{sso[u]} offen")
            a("s_branch L_fchk")
        L = lab("poll"); a.label(L)
        for u in range(nld): a(f"buffer_load_dwordx4 {vr(FD+4*u,4)}, v1, {WSRD}, s{sso[u]} offen sc1" + NT("fld"))
        if first_plain: a.label("L_fchk")
        a("s_waitcnt vmcnt(0)")
        untag(FD, 4*nld, 8)
        retry(L, sleep=fin_sleep, masked=True)
    stamp(6)
    n = nld
    while n > 1:
        n //= 2
        for u in range(n):
            for i in (0, 2): a(f"v_pk_add_f32 {vr(FD+4*u+i,2)}, {vr(FD+4*u+i,2)}, {vr(FD+4*(u+n)+i,2)}")
    a(f"v_permlane32_swap_b32 v{FD}, v{FD+2}"); a(f"v_permlane32_swap_b32 v{FD+1}, v{FD+3}")
    a(f"v_pk_add_f32 {vr(FD,2)}, {vr(FD,2)}, {vr(FD+2,2)}")
    a(f"v_permlane16_swap_b32 v{FD}, v{FD+1}")
    a(f"v_add_f32 v8, v{FD}, v{FD+1}")
    allreduce("v_add_f32", 8, 9, ['q2', 'r4', 'r8'][fk-1:])
    a("v_add_f32 v8, v8, v31")
    a("v_cvt_pk_bf16_f32 v8, v8, v8")
    m = ((1 << I) - 1) * 0x00010001
    a(f"s_mov_b32 exec_lo, {hex(m)}"); a(f"s_mov_b32 exec_hi, {hex(m)}")
    a(f"buffer_store_short v8, v30, s[{sSRD2}:{sSRD2+3}], 0 offen")
    a("s_cmp_lg_u32 s2, 0"); a("s_cbranch_scc1 L_noep")
    a("s_mov_b64 exec, 1")
    a(f"buffer_store_dword v29, v{vZ}, {WSRD}, 0 offen offset:{EP} sc1")
    a.label("L_noep")
    a("s_mov_b64 exec, -1")
    stamp(7)
    finish_wave()

    if stamps:
        a.label("L_stamp_out")
        a("s_mov_b64 exec, -1")
        a("s_waitcnt vmcnt(0) lgkmcnt(0)")
        for k in range(8): a(f"v_mov_b32 v{8+k}, s{sSTAMP+2*k}")
        a(f"s_mul_i32 s{sT0}, s2, 12"); a(f"s_add_u32 s{sT0}, s{sT0}, s{sWAVE}"); a(f"s_lshl_b32 s{sT0}, s{sT0}, 5"); a(f"s_add_u32 s{sT0}, s{sT0}, {STAMP}")
        a("s_mov_b64 exec, 1")
        a(f"buffer_store_dwordx4 v[8:11], v{vZ}, {WSRD}, s{sT0} offen")
        a(f"buffer_store_dwordx4 v[12:15], v{vZ}, {WSRD}, s{sT0} offen offset:16")
    a.label("L_exit")
    a("s_endpgm")
    order = ["pro", "H"] + (["K1"] if lay2 else []) + ["H3c", "H0c", "H1c", "V", "K2", "rest"]
    a.L = [ln for k in order for ln in secs[k]]
    body = a.finish()
    txt = HEADER + f"; @launch grid=(256,1,1) block=(768,1,1) lds={LDS_BYTES}\n"
    txt += '.amdgcn_target "amdgcn-amd-amdhsa--gfx950"\n' + DOC.lstrip("\n") + '.text\n'
    txt += f".globl {NAME}_kernel\n.p2align 8\n.type {NAME}_kernel,@function\n" + body
    txt += f'''.section .rodata,"a"
.p2align 6
.amdhsa_kernel {NAME}_kernel
  .amdhsa_next_free_vgpr 168
  .amdhsa_next_free_sgpr 102
  .amdhsa_accum_offset 168
  .amdhsa_group_segment_fixed_size 0
  .amdhsa_kernarg_size 88
  .amdhsa_user_sgpr_count 2
  .amdhsa_user_sgpr_kernarg_segment_ptr 1
  .amdhsa_system_sgpr_workgroup_id_x 1
  .amdhsa_float_denorm_mode_32 3
.end_amdhsa_kernel
'''
    return txt

U_ = dict(pk=0, pv=0, kgate=True, wo_sig=31, touch=("out", "fp", "v", "wo"), xlast=True, kpre=3)
U_["rot"] = 0
U_["touch"] = ("fp",)
U_["qpl"] = True
if __name__ == "__main__":
    open("fin.s", "w").write(gen(**U_))
    open("fins.s", "w").write(gen(stamps=True, **U_))
    open("cdna_kernels/" + NAME + ".s", "w").write(gen(**U_))
```

```python
import sys
from asmlib import *
NAME = "parallel_sum__gqa_block_cached__dense_activation_silu__decode"

EP, QP, HP, ST, OP, FP, STAMP = 0x0, 0x1000, 0xC4000, 0x138000, 0x140000, 0x180000, 0x300000
WS_SIZE = 0x400000
F_P1, F_MIX, F_Q, F_CLR, F_P, F_VISS, F_OCNT, F_FW, F_PUB, F_FP, F_WO, F_STAT, F_KISS = 0, 1, 2, 3, 4, 8, 9, 10, 11, 12, 13, 14, 15
L_ZERO, L_FW, L_Q, L_P, L_OS, L_AO, L_ST, L_X = 0x80, 0x180, 0x200, 0x600, 0x1600, 0x2e00, 0x3000, 0x3100
L_M, L_AH = 0x3900, 0x4100
F_MLP = F_PUB
F_P0 = 16
F_XN = 17
F_W2 = 18
L_XN = 0x600
LDS_BYTES = 0x4200

DOC = r'''
; ---------------------------------------------------------------------------------------------------------------
; One persistent launch, 256 workgroups (one per CU) x 12 waves.  Workgroup i: kv head = i&7, j = i>>3, batch = j>>3,
; key split = j&7 (512 keys).  The 32 workgroups of one kv head form a group and exchange data through d_ws.
;   wave 3     LayerNorm, workgroup softmax statistics
; Hand-offs carry a per-launch tag (mix of the epoch word ws[0], rewritten at the end) or an "empty" marker written in
; repeated write-through (d_debug word = request for that).  Every wait is bounded.
; ---------------------------------------------------------------------------------------------------------------
'''
HEADER = open("cdna_kernels/" + NAME + ".s.ref").read().split("; Override launch")[0]

def gen(stamps=False, gate_v=True, wo_sig=30, pk=9, pv=12, pl=0, kgate=True, fast=True, combine=True, fk=1, first_plain=False, fin_sleep=0, qplain=False, hplain=True, early_bar=False, layout=True, warm=True, tlb=0, abl=(), nt=(), kpre=4, lateclr=True, prog=True, pipe2=True, late_hp=True, diag=False, touch=(), diag2=False, xlast=False, two=False, depth=2, stag=4, numa=False, w1late=0, rot=0, lay2=True, g4k=0, omap='w0 w1 t0 t1 g0 g1 t2 t3 t4', stfirst=False, h1clr=True, qpl=False, opt=True, w2late=True, tlate=False, w2_sig=None, own_touch=True, split=True, wqs=None, noack=False, al=True, heavy=0):
    pos = {k: i + 8 for i, k in enumerate(omap.split())}
    toff = lambda tt: sum(((tt >> i) & 1) << pos[f't{i}'] for i in range(5))
    NT = lambda k: ' nt' if k in nt else ''
    a = Asm()
    uid = [0]
    def lab(p):
        uid[0] += 1; return f"L_{p}{uid[0]}"
    sX, sK, sV, sWQ, sWO, sW1, sW2, sOUT, sDBG, sWS = 4, 6, 8, 10, 12, 16, 18, 20, 22, 24
    sWAVE, sKVH, sJ, sB, sS, sW = 26, 27, 28, 29, 30, 31
    sSRD, sSRD2, sSRDW = 32, 36, 40
    sT0, sT1, sT2, sT3, sT4, sT5 = 44, 45, 46, 47, 48, 49
    sCNT, sSELLO, sSELHI, sTAG = 50, 51, 52, 53
    sM = 54
    sO = 62
    sHF, sCQ, sDB, sXCC = 70, 71, 72, 73
    sM1, sM2, sHI, sMIX = 74, 76, 78, 79
    sSTAMP = 80
    sTB = 96
    vZ, vONE = 6, 7
    WSRD = f"s[{sSRDW}:{sSRDW+3}]"
    def dstamp(k):
        if stamps and diag2: a(f"s_memrealtime s[{sSTAMP+2*k}:{sSTAMP+2*k+1}]")
    def stamp(k):
        if diag2 and k in (3, 4, 6): return
        if stamps: a(f"s_memrealtime s[{sSTAMP+2*k}:{sSTAMP+2*k+1}]")
    def finish_wave():
        a("s_branch L_stamp_out" if stamps else "s_endpgm")
    def srd(dst, ptr, size):
        a(f"s_mov_b32 s{dst}, s{ptr}"); a(f"s_mov_b32 s{dst+1}, s{ptr+1}")
        a(f"s_mov_b32 s{dst+2}, {hex(size)}"); a(f"s_mov_b32 s{dst+3}, 0x20000")
    def slab_srd(ptr):
        a(f"s_add_u32 s{sSRD}, s{ptr}, s{sT5}"); a(f"s_addc_u32 s{sSRD+1}, s{ptr+1}, 0")
        a(f"s_mov_b32 s{sSRD+2}, 0x20000"); a(f"s_mov_b32 s{sSRD+3}, 0x20000")
    def step(tt):
        h0, h1 = toff(tt) & ~4095, toff(tt + 1) & ~4095
        if h0 == h1: a("s_nop 0")
        elif h1 < 0x8000: a(f"s_movk_i32 s{sO}, {h1}")
        else: a(f"s_mov_b32 s{sO}, {h1}")
    def goff(dst, bit0, base):
        if pos['g1'] == pos['g0'] + 1:
            a(f"v_bfe_u32 v5, v0, {bit0}, 2"); a(f"v_lshl_add_u32 v{dst}, v5, {pos['g0']}, v{base}")
        else:
            a(f"v_bfe_u32 v5, v0, {bit0}, 1"); a(f"v_lshl_add_u32 v{dst}, v5, {pos['g0']}, v{base}")
            a(f"v_bfe_u32 v5, v0, {bit0+1}, 1"); a(f"v_lshl_add_u32 v{dst}, v5, {pos['g1']}, v{dst}")
    def lds_wait(flag, value, sleep=1, vt=5, addr=None):
        L, D = lab("w"), lab("d")
        a.label(L)
        a(f"ds_read_b32 v{vt}, v{vZ if addr is None else addr} offset:{flag*4}")
        a("s_waitcnt lgkmcnt(0)")
        a(f"v_readfirstlane_b32 s{sT0}, v{vt}")
        a(f"s_cmp_ge_u32 s{sT0}, {value}")
        a(f"s_cbranch_scc1 {D}")
        if sleep: a(f"s_sleep {sleep}")
        a(f"s_sub_u32 s{sCNT}, s{sCNT}, 1")
        a(f"s_cbranch_scc0 {L}")
        a("s_endpgm")
        a.label(D)
    def lds_signal(flag, addr=None):
        a("s_mov_b64 exec, 1")
        a(f"ds_add_u32 v{vZ if addr is None else addr}, v{vONE} offset:{flag*4}")
        a("s_mov_b64 exec, -1")
    def retry(L, sleep=0, masked=False):
        D = lab("d")
        if masked: a("s_mov_b64 exec, vcc")
        a(f"s_cbranch_vccz {D}")
        if sleep: a(f"s_sleep {sleep}")
        a(f"s_sub_u32 s{sCNT}, s{sCNT}, 1")
        a(f"s_cbranch_scc0 {L}")
        a("s_endpgm")
        a.label(D)
        if masked: a("s_mov_b64 exec, -1")
    def read_mix(vt):
        a(f"ds_read_b32 v{vt}, v{vZ} offset:{F_MIX*4}"); a("s_waitcnt lgkmcnt(0)"); a(f"v_readfirstlane_b32 s{sMIX}, v{vt}")
    def group_store(text):
        if not fast:
            a(text + " sc1"); return
        S, D = lab("s"), lab("d")
        a(f"s_cmp_lg_u32 s{sMIX}, 0"); a(f"s_cbranch_scc1 {S}")
        a(text); a(f"s_branch {D}")
        a.label(S); a(text + " sc1"); a.label(D)
    DPPM = "row_mask:0xf bank_mask:0xf"
    def allreduce(op, x, t, steps):
        for s in steps:
            if s == 'q1': a(f"{op}_dpp v{x}, v{x}, v{x} quad_perm:[1,0,3,2] {DPPM}")
            elif s == 'q2': a(f"{op}_dpp v{x}, v{x}, v{x} quad_perm:[2,3,0,1] {DPPM}")
            elif s in ('r1', 'r2', 'r4', 'r8'): a(f"{op}_dpp v{x}, v{x}, v{x} row_ror:{s[1:]} {DPPM}")
            else:
                a(f"v_mov_b32 v{t}, v{x}")
                a(f"v_permlane{s[1:]}_swap_b32 v{x}, v{t}")
                a(f"{op} v{x}, v{x}, v{t}")
    def rnd(x):
        a(f"v_cvt_pk_bf16_f32 v{x}, v{x}, v{x}"); a(f"v_and_b32 v{x}, 0xffff0000, v{x}")
    def perms(e, D, dst):
        x = e >> 1
        sel = sSELHI if e & 1 else sSELLO
        for m in range(4):
            a(f"v_perm_b32 v{dst+m}, v{D+4*(2*m+1)+x}, v{D+4*(2*m)+x}, s{sel}")
    def emap(e, mode):
        return (e >> 2, e & 3) if mode == 'A' else (e & 1, e >> 1)
    def block(D, A, BT, ACC, mode, first=False):
        perms(0, D, BT)
        seen = set()
        for e in range(8):
            if e < 7: perms(e + 1, D, BT + 4 * ((e + 1) & 1))
            ac, g = emap(e, mode)
            c = "0" if (first and ac not in seen) else vr(ACC + 4*ac, 4)
            seen.add(ac)
            a(f"v_mfma_f32_16x16x32_bf16 {vr(ACC+4*ac,4)}, {vr(A+4*g,4)}, {vr(BT+4*(e&1),4)}, {c}")
    def block8(D, A, BT, ACC, first=False):
        perms(0, D, BT)
        for e in range(8):
            if e < 7: perms(e + 1, D, BT + 4 * ((e + 1) & 1))
            c = "0" if (first and not e & 1) else vr(ACC + 4*(e >> 1), 4)
            a(f"v_mfma_f32_16x16x32_bf16 {vr(ACC+4*(e>>1),4)}, {vr(A+4*(e&1),4)}, {vr(BT+4*(e&1),4)}, {c}")
    def mask2(src, A):
        for v in range(2):
            for m in range(4):
                a(f"v_cndmask_b32 v{A+4*v+m}, 0, v{src+m}, s[{sM1+2*v}:{sM1+2*v+1}]")
    def dense8(ACC):
        for aa in range(4):
            for p in (0, 2): a(f"v_mov_b32_dpp v{ACC+4*aa+p}, v{ACC+4*aa+p+1} row_ror:8 row_mask:0x5 bank_mask:0xc")
        for aa in range(4):
            for p in (0, 2): a(f"v_mov_b32_dpp v{ACC+4*aa+p}, v{ACC+4*aa+p} row_ror:8 row_mask:0xa bank_mask:0x3")
        for aa in range(4):
            for p in (0, 2): a(f"v_mov_b32_dpp v{ACC+4*aa+p}, v{ACC+4*aa+p+1} quad_perm:[0,1,2,3] row_mask:0xa bank_mask:0xc")
        for aa in range(4): a(f"v_permlane16_swap_b32 v{ACC+4*aa}, v{ACC+4*aa+2}")
        for aa in range(4): a(f"v_add_f32 v{ACC+4*aa}, v{ACC+4*aa}, v{ACC+4*aa+2}")
    def dense_to_lds(ACC, base):
        a("v_lshlrev_b32 v4, 5, v0"); a("v_and_b32 v4, 0x3ff, v4"); a("v_lshrrev_b32 v5, 5, v0"); a("v_lshl_add_u32 v4, v5, 2, v4")
        for aa in range(4): a(f"ds_write_b32 v4, v{ACC+4*aa} offset:{base+8*aa}")
    def transpose4(R):
        a(f"v_permlane32_swap_b32 v{R}, v{R+2}"); a(f"v_permlane32_swap_b32 v{R+1}, v{R+3}")
        a(f"v_permlane16_swap_b32 v{R}, v{R+1}"); a(f"v_permlane16_swap_b32 v{R+2}, v{R+3}")
    def mask_variants(src, A):
        for g in range(4):
            for m in range(4):
                a(f"v_cndmask_b32 v{A+4*g+m}, 0, v{src+m}, s[{sM+2*g}:{sM+2*g+1}]")
    def set_masks():
        for g in range(4):
            v = 0x000F000F << (4 * g)
            a(f"s_mov_b32 s{sM+2*g}, {hex(v)}"); a(f"s_mov_b32 s{sM+2*g+1}, {hex(v)}")
    def set_sel():
        a(f"s_mov_b32 s{sSELLO}, 0x05040100"); a(f"s_mov_b32 s{sSELHI}, 0x07060302")
    def epoch_load():
        a(f"s_load_dword s{sTAG}, s[{sWS}:{sWS+1}], {EP}")
    def make_tag():
        a("s_waitcnt lgkmcnt(0)")
        a(f"s_mul_i32 s{sTAG}, s{sTAG}, 0x9e3779b1"); a(f"s_add_u32 s{sTAG}, s{sTAG}, 0x7f4a7c15")
        for k in range(4): a(f"s_bfe_u32 s{sTB+k}, s{sTAG}, {hex(0x80000 | (8*k))}")
        a(f"s_mov_b32 s{sHI}, 0xffffff00")
    def bytetag(R, n):
        for i in range(n): a(f"v_and_b32 v{R+i}, s{sHI}, v{R+i}")
        for i in range(n): a(f"v_or_b32 v{R+i}, s{sTB+(i&3)}, v{R+i}")
    def untag(R, n, T):
        for i in range(n): a(f"v_xor_b32 v{R+i}, s{sTB+(i&3)}, v{R+i}")
        nt = n // 8
        for t in range(nt): a(f"v_or3_b32 v{T+t}, v{R+8*t}, v{R+8*t+1}, v{R+8*t+2}")
        for t in range(nt): a(f"v_or3_b32 v{T+t}, v{T+t}, v{R+8*t+3}, v{R+8*t+4}")
        for t in range(nt): a(f"v_or3_b32 v{T+t}, v{T+t}, v{R+8*t+5}, v{R+8*t+6}")
        for t in range(nt): a(f"v_or_b32 v{T+t}, v{T+t}, v{R+8*t+7}")
        for t in range(1, nt): a(f"v_or_b32 v{T}, v{T}, v{T+t}")
        a(f"v_and_b32 v{T}, 0xff, v{T}")
        a(f"v_cmp_ne_u32 vcc, 0, v{T}")
    def reduce8to2(R):
        for i in range(4): a(f"v_permlane32_swap_b32 v{R+i}, v{R+4+i}")
        for i in (0, 2): a(f"v_pk_add_f32 {vr(R+i,2)}, {vr(R+i,2)}, {vr(R+4+i,2)}")
        for i in range(2): a(f"v_permlane16_swap_b32 v{R+i}, v{R+2+i}")
        a(f"v_pk_add_f32 {vr(R,2)}, {vr(R,2)}, {vr(R+2,2)}")

    secs = {}
    def section(name):
        secs.setdefault(name, []); a.L = secs[name]
    def bar():
        if not early_bar: a("s_barrier")
    section("pro")
    a(f"{NAME}_kernel:")
    stamp(0)
    a("s_cmp_ge_u32 s2, 256"); a("s_cbranch_scc1 L_exit")
    a("s_load_dwordx16 s[4:19], s[0:1], 0")
    def karg2():
        a("s_load_dwordx4 s[20:23], s[0:1], 64")
        a("s_load_dwordx2 s[24:25], s[0:1], 80")
    if not split: karg2()
    a("v_lshrrev_b32 v1, 6, v0")
    a("v_and_b32 v0, 63, v0")
    a(f"v_mov_b32 v{vZ}, 0")
    a(f"v_readfirstlane_b32 s{sWAVE}, v1")
    a(f"v_mov_b32 v{vONE}, 0")
    a("v_lshlrev_b32 v2, 3, v0")
    a(f"ds_write_b64 v2, v[{vZ}:{vONE}]")
    a(f"v_mov_b32 v{vONE}, 1")
    a(f"s_and_b32 s{sKVH}, s2, 7"); a(f"s_lshr_b32 s{sJ}, s2, 3")
    a(f"s_lshr_b32 s{sB}, s{sJ}, 3"); a(f"s_and_b32 s{sS}, s{sJ}, 7")
    a(f"s_mov_b32 s{sCNT}, 0x40000")
    a("v_lshrrev_b32 v2, 4, v0"); a("v_and_b32 v3, 15, v0")
    if not early_bar: a(f"s_cmp_lt_u32 s{sWAVE}, 4"); a("s_cbranch_scc1 L_H")
    a(f"s_lshl_b32 s{sT0}, s{sB}, 3"); a(f"s_add_u32 s{sT0}, s{sT0}, s{sKVH}"); a(f"s_lshl_b32 s{sT0}, s{sT0}, 20")
    a(f"s_lshl_b32 s{sT1}, s{sS}, 17"); a(f"s_add_u32 s{sT0}, s{sT0}, s{sT1}")
    a(f"s_and_b32 s{sW}, s{sWAVE}, 3")
    if pos['w1'] == pos['w0'] + 1: a(f"s_lshl_b32 s{sT1}, s{sW}, {pos['w0']}")
    else:
        a(f"s_and_b32 s{sT1}, s{sW}, 1"); a(f"s_lshl_b32 s{sT1}, s{sT1}, {pos['w0']}"); a(f"s_add_u32 s{sT0}, s{sT0}, s{sT1}"); a(f"s_lshr_b32 s{sT1}, s{sW}, 1"); a(f"s_lshl_b32 s{sT1}, s{sT1}, {pos['w1']}")
    a(f"s_add_u32 s{sT5}, s{sT0}, s{sT1}")
    if rot: a(f"s_mul_i32 s{sO}, s{sJ}, {4096*rot}"); a(f"s_mov_b32 s{sO+1}, 0x1f000"); a(f"s_and_b32 s{sO}, s{sO}, s{sO+1}")
    else: a(f"s_mov_b32 s{sO}, 0")
    if not early_bar: a(f"s_cmp_ge_u32 s{sWAVE}, 8"); a("s_cbranch_scc1 L_V")

    KD = 40
    a("v_lshlrev_b32 v4, 6, v2"); a("v_and_b32 v5, 3, v0"); a("v_lshl_add_u32 v4, v5, 4, v4")
    a("v_bfe_u32 v5, v0, 2, 2"); a("v_lshl_add_u32 v36, v5, 8, v4")
    goff(1, 2, 4)
    if tlb == 3:
        a(f"s_lshl_b32 s64, s2, 12"); a(f"s_lshl_b32 s65, s{sB}, 20"); a("s_add_u32 s65, s65, s64"); a("s_and_b32 s66, s2, 63"); a("s_lshl_b32 s66, s66, 6")
    a("s_waitcnt lgkmcnt(0)")
    if tlb == 3:
        a(f"s_cmp_lg_u32 s{sW}, 0"); a("s_cbranch_scc1 L_ntlb")
        a(f"s_load_dword s70, s[{sWQ}:{sWQ+1}], s65"); a(f"s_load_dword s71, s[{sW1}:{sW1+1}], s64"); a(f"s_load_dword s72, s[{sX}:{sX+1}], s66")
        a.label("L_ntlb")
    if early_bar:
        a("s_barrier")
        a(f"s_cmp_lt_u32 s{sWAVE}, 4"); a("s_cbranch_scc1 L_H")
        a(f"s_cmp_ge_u32 s{sWAVE}, 8"); a("s_cbranch_scc1 L_V")
    slab_srd(sK)
    stamp(1)
    for tt in range(32):
        if tt == kpre and not early_bar:
            if lay2: a("s_branch L_K1"); section("K1"); a("; ---- K waves: remaining loads (one scalar instruction between loads lets the other waves' memory instructions in)"); a.label("L_K1")
            a("s_barrier")
            if stamps and diag: a(f"s_waitcnt vmcnt({kpre-1})"); stamp(3)
        B, t8 = tt >> 3, tt & 7
        t = 4 * (2*B + (t8 & 1)) + (t8 >> 1)
        a(f"buffer_load_dwordx4 {vr(KD+4*t,4)}, v1, s[{sSRD}:{sSRD+3}], s{sO} offen offset:{toff(tt) & 4095} nt")
        if tt < 31: step(tt)
        if pk and pk <= tt < 31: a(f"s_waitcnt vmcnt({pk})")
    if kgate: lds_signal(F_KISS)
    stamp(2)
    if layout: a("s_branch L_K2"); section("K2"); a("; ---- K waves: scores and local softmax"); a.label("L_K2")
    if stamps:
        if split: karg2(); a("s_waitcnt lgkmcnt(0)")
        srd(sSRDW, sWS, WS_SIZE)
    a(f"s_mov_b32 s{sM1}, 0xaaaaaaaa"); a(f"s_mov_b32 s{sM1+1}, 0xaaaaaaaa")
    a(f"s_mov_b32 s{sM2}, 0xcccccccc"); a(f"s_mov_b32 s{sM2+1}, 0xcccccccc")
    a("v_lshlrev_b32 v37, 8, v2"); a("v_lshl_add_u32 v37, v3, 2, v37")
    a(f"s_lshl_b32 s{sT1}, s{sW}, 10"); a(f"v_add_u32 v37, s{sT1}, v37")
    a("v_lshlrev_b32 v38, 3, v2"); a(f"s_lshl_b32 s{sT1}, s{sW}, 5"); a(f"v_add_u32 v38, s{sT1}, v38")
    a(f"s_lshl_b32 s{sT1}, s{sW}, 2"); a(f"v_mov_b32 v39, s{sT1}")
    lds_wait(F_Q, 4, sleep=2)
    a(f"ds_read_b128 v[8:11], v36 offset:{L_Q}")
    a("s_waitcnt vmcnt(0) lgkmcnt(0)")
    stamp(4)
    QR, T0, Y = 8, 12, 28
    def Dreg(u): return T0 if u == 0 else KD + 16 * (u - 1)
    def mf(u):
        for jj in range(4):
            a(f"v_mfma_f32_16x16x32_bf16 {vr(Dreg(u)+4*jj,4)}, {vr(QR,4)}, {vr(KD+16*u+4*jj,4)}, 0")
    ZR = [32, 33, 34, 35, 12, 13, 14, 15]
    mf(0)
    for u in range(8):
        if u < 7: mf(u + 1)
        D = Dreg(u)
        for s in range(4):
            for jj in range(4):
                q = f"quad_perm:[{s},{s},{s},{s}] {DPPM}"
                if s == 0: a(f"v_mov_b32_dpp v{Y+jj}, v{D+4*jj} {q}")
                else: a(f"v_add_f32_dpp v{Y+jj}, v{D+4*jj+s}, v{Y+jj} {q}")
        a(f"v_cndmask_b32 v{Y}, v{Y}, v{Y+1}, s[{sM1}:{sM1+1}]")
        a(f"v_cndmask_b32 v{Y+2}, v{Y+2}, v{Y+3}, s[{sM1}:{sM1+1}]")
        a(f"v_cndmask_b32 v{ZR[u]}, v{Y}, v{Y+2}, s[{sM2}:{sM2+1}]")
    a(f"s_mov_b32 s{sT1}, 0x3db504f3")
    for B in range(4): a(f"v_cvt_pk_bf16_f32 v{Y+B}, v{ZR[2*B]}, v{ZR[2*B+1]}")
    for B in range(4):
        z0, z1 = ZR[2*B], ZR[2*B+1]
        a(f"v_lshlrev_b32 v{z0}, 16, v{Y+B}"); a(f"v_and_b32 v{z1}, 0xffff0000, v{Y+B}")
        a(f"v_mul_f32 v{z0}, s{sT1}, v{z0}"); a(f"v_mul_f32 v{z1}, s{sT1}, v{z1}")
        a(f"v_cvt_pk_bf16_f32 v{Y+B}, v{z0}, v{z1}")
    for B in range(4):
        a(f"v_lshlrev_b32 v{ZR[2*B]}, 16, v{Y+B}"); a(f"v_and_b32 v{ZR[2*B+1]}, 0xffff0000, v{Y+B}")
    MX, SM = 16, 17
    a(f"v_max3_f32 v{MX}, v{ZR[0]}, v{ZR[1]}, v{ZR[2]}"); a(f"v_max3_f32 v{MX}, v{MX}, v{ZR[3]}, v{ZR[4]}")
    a(f"v_max3_f32 v{MX}, v{MX}, v{ZR[5]}, v{ZR[6]}"); a(f"v_max_f32 v{MX}, v{MX}, v{ZR[7]}")
    allreduce("v_max_f32", MX, 18, ['r8', 'r4', 'r2', 'r1'])
    a(f"s_mov_b32 s{sT1}, 0x3fb8aa3b")
    for z in ZR: a(f"v_sub_f32 v{z}, v{z}, v{MX}")
    for z in ZR: a(f"v_mul_f32 v{z}, s{sT1}, v{z}")
    for z in ZR: a(f"v_exp_f32 v{z}, v{z}")
    for B in range(4): a(f"v_cvt_pk_bf16_f32 v{Y+B}, v{ZR[2*B]}, v{ZR[2*B+1]}")
    for B in range(4): a(f"ds_write_b32 v37, v{Y+B} offset:{L_P + 64*B}")
    lds_signal(F_P, addr=39)
    a(f"v_add_f32 v{SM}, v{ZR[0]}, v{ZR[1]}")
    for z in ZR[2:]: a(f"v_add_f32 v{SM}, v{SM}, v{z}")
    allreduce("v_add_f32", SM, 18, ['r8', 'r4', 'r2', 'r1'])
    a(f"ds_write_b64 v38, v[{MX}:{SM}] offset:{L_ST}")
    lds_signal(F_STAT)
    stamp(5)
    finish_wave()

    if layout: section("V")
    a("; ---- V waves"); a.label("L_V")
    if split: karg2()
    VD, AV, BT, ACC = 40, 8, 24, 32
    a("v_lshlrev_b32 v4, 4, v3"); goff(1, 4, 4)
    if not early_bar:
        a("s_waitcnt lgkmcnt(0)")
        if tlb in (1, 2):
            a(f"s_load_dword s64, s[{sK}:{sK+1}], s{sO}"); a(f"s_load_dword s65, s[{sV}:{sV+1}], s{sO}")
            if tlb >= 2:
                a(f"s_lshl_b32 s{sT1}, s{sKVH}, 19")
                a(f"s_load_dword s66, s[{sWO}:{sWO+1}], s{sT1}"); a(f"s_load_dword s67, s[{sW2}:{sW2+1}], 0")
                a(f"s_load_dword s68, s[{sOUT}:{sOUT+1}], 0"); a(f"s_load_dword s69, s[{sW1}:{sW1+1}], 0")
                a(f"s_lshl_b32 s{sT1}, s{sJ}, 17"); a(f"s_load_dword s63, s[{sWQ}:{sWQ+1}], s{sT1}")
        a("s_barrier")
    slab_srd(sV)
    if "v" in touch:
        a(f"s_cmp_lg_u32 s{sW}, 3"); a("s_cbranch_scc1 L_nvt")
        lds_wait(F_P1, 1, sleep=2)
        a("s_mov_b64 exec, 1"); a(f"buffer_load_dword v8, v{vZ}, s[{sSRD}:{sSRD+3}], s{sO} offen nt"); a("s_mov_b64 exec, -1")
        a.label("L_nvt")
    def vloads(pace, last):
        for tt in range(32):
            a(f"buffer_load_dwordx4 {vr(VD+4*tt,4)}, v1, s[{sSRD}:{sSRD+3}], s{sO} offen offset:{toff(tt) & 4095} nt")
            if tt < 31: step(tt)
            if pace and pace <= tt < 31: a(f"s_waitcnt vmcnt({pace})")
            if last and w2_sig is not None and tt == w2_sig: lds_signal(F_W2)
            if wo_sig is not None and tt == wo_sig:
                if last: lds_signal(F_WO)
                elif not gate_v:
                    a(f"s_cmp_lg_u32 s{sW}, 3"); a("s_cbranch_scc1 L_nowo"); lds_signal(F_WO); a.label("L_nowo")
    if gate_v:
        a(f"s_cmp_lg_u32 s{sW}, 3"); a("s_cbranch_scc1 L_Vgo")
        lds_wait(F_VISS, 3, sleep=1)
        stamp(1)
        vloads(pl, True)
        a("s_branch L_Vissued")
        a.label("L_Vgo")
    if kgate: lds_wait(F_KISS, 4, sleep=1)
    stamp(1)
    vloads(pv, False)
    a.label("L_Vissued")
    lds_signal(F_VISS)
    stamp(2)
    set_sel(); set_masks()
    srd(sSRDW, sWS, WS_SIZE)
    a("v_and_b32 v3, 3, v0"); a("v_lshlrev_b32 v3, 8, v3"); a("v_lshl_add_u32 v3, v2, 4, v3")
    a(f"s_lshl_b32 s{sT1}, s{sW}, 10"); a(f"s_add_u32 s{sT1}, s{sT1}, {L_P}"); a(f"v_add_u32 v1, s{sT1}, v3")
    a(f"v_mov_b32 v{BT}, {L_ZERO}")
    for g in range(4): a(f"v_cndmask_b32 v{2+g}, v{BT}, v1, s[{sM+2*g}:{sM+2*g+1}]")
    a(f"s_lshl_b32 s{sT1}, s{sW}, 2"); a(f"v_mov_b32 v{BT}, s{sT1}")
    lds_wait(F_P, 1, sleep=2, vt=BT+1, addr=BT)
    stamp(3)
    def vblock(B):
        for g in range(4): a(f"ds_read_b128 {vr(AV+4*g,4)}, v{2+g} offset:{64*B}")
        a(f"s_waitcnt vmcnt({24-8*B}) lgkmcnt(0)")
        block(VD + 32*B, AV, BT, ACC, 'B', first=(B == 0))
    for B in range(3): vblock(B)
    a(f"s_cmp_eq_u32 s{sW}, 3"); a("s_cbranch_scc1 L_Vlast")
    vblock(3)
    a(f"s_lshl_b32 s{sT1}, s{sW}, 11"); a("v_lshlrev_b32 v1, 4, v0"); a(f"v_add_u32 v1, s{sT1}, v1")
    a(f"ds_write_b128 v1, {vr(ACC,4)} offset:{L_OS}"); a(f"ds_write_b128 v1, {vr(ACC+4,4)} offset:{L_OS+1024}")
    lds_signal(F_OCNT)
    stamp(5)
    finish_wave()
    a("; ---- wave 11: merge and publish"); a.label("L_Vlast")
    a("s_setprio 3")
    OSR, FWR, TOT = VD, VD + 24, VD + 40
    a("v_lshlrev_b32 v95, 4, v0")
    a(f"s_lshl_b32 s{sT1}, s{sKVH}, 5"); a(f"s_add_u32 s{sT1}, s{sT1}, s{sJ}"); a(f"s_lshl_b32 s{sT1}, s{sT1}, 10")
    a(f"s_add_u32 s{sT5}, s{sT1}, {OP}")
    if fast: read_mix(94)
    lds_wait(F_OCNT, 3, sleep=1, vt=94)
    lds_wait(F_FW, 1, sleep=1, vt=94)
    for w in range(3):
        for ac in range(2): a(f"ds_read_b128 {vr(OSR+8*w+4*ac,4)}, v95 offset:{L_OS+2048*w+1024*ac}")
    for w in range(4): a(f"ds_read_b128 {vr(FWR+4*w,4)}, v{vZ} offset:{L_FW+16*w}")
    a("s_waitcnt lgkmcnt(0)")
    for ac in range(2):
        for h in range(4): a(f"v_mul_f32 v{TOT+4*ac+h}, v{FWR+h}, v{OSR+4*ac+h}")
    for w in range(1, 3):
        for ac in range(2):
            for h in range(4): a(f"v_fmac_f32 v{TOT+4*ac+h}, v{FWR+4*w+h}, v{OSR+8*w+4*ac+h}")
    for g in range(4): a(f"ds_read_b128 {vr(AV+4*g,4)}, v{2+g} offset:{64*3}")
    if prog:
        PB, D3 = VD + 56, VD + 96
        for m in range(4):
            a(f"s_waitcnt vmcnt({6-2*m})" + (" lgkmcnt(0)" if m == 3 else ""))
            if m == 3: stamp(4)
            for e in range(8):
                a(f"v_perm_b32 v{PB+4*e+m}, v{D3+4*(2*m+1)+(e>>1)}, v{D3+4*(2*m)+(e>>1)}, s{sSELHI if e & 1 else sSELLO}")
                if m == 3 and e >= 2:
                    ac, g = emap(e - 2, 'B')
                    a(f"v_mfma_f32_16x16x32_bf16 {vr(ACC+4*ac,4)}, {vr(AV+4*g,4)}, {vr(PB+4*(e-2),4)}, {vr(ACC+4*ac,4)}")
        for e in (6, 7):
            ac, g = emap(e, 'B')
            a(f"v_mfma_f32_16x16x32_bf16 {vr(ACC+4*ac,4)}, {vr(AV+4*g,4)}, {vr(PB+4*e,4)}, {vr(ACC+4*ac,4)}")
    else:
        a(f"s_waitcnt vmcnt(0) lgkmcnt(0)")
        stamp(4)
        block(VD + 96, AV, BT, ACC, 'B')
    for ac in range(2):
        for h in range(4): a(f"v_fmac_f32 v{TOT+4*ac+h}, v{FWR+12+h}, v{ACC+4*ac+h}")
    for h in range(4): a(f"v_cvt_pk_bf16_f32 v{BT+h}, v{TOT+h}, v{TOT+4+h}")
    transpose4(BT)
    for h in range(4): a(f"v_min_u32 v{BT+h}, 0xfffffffe, v{BT+h}")
    group_store(f"buffer_store_dwordx4 {vr(BT,4)}, v95, {WSRD}, s{sT5} offen")
    stamp(5)
    finish_wave()

    if layout: section("H")
    a("; ---- helper waves, first loads"); a.label("L_H")
    if split: karg2()
    dstamp(3)
    a("s_setprio 2")
    AV, BT, ACC, WD, XS, U, XA = 8, 24, 32, 40, 104, 120, 136
    def xn_addr(s_k0bytes):
        a("v_and_b32 v4, 3, v0"); a("v_lshlrev_b32 v4, 10, v4"); a("v_lshl_add_u32 v4, v2, 5, v4")
        a("v_bfe_u32 v5, v0, 2, 1"); a("v_lshl_add_u32 v4, v5, 4, v4"); a(f"s_add_u32 s{sT0}, s{s_k0bytes}, {L_XN}"); a(f"v_add_u32 v4, s{sT0}, v4")
        a(f"v_mov_b32 v5, {L_ZERO}"); a("s_mov_b32 vcc_lo, 0x00ff00ff"); a("s_mov_b32 vcc_hi, 0x00ff00ff")
        a("v_cndmask_b32 v160, v5, v4, vcc"); a("v_cndmask_b32 v161, v4, v5, vcc")
    def hconst():
        a("v_mov_b32 v166, 0")
        set_sel(); set_masks()
        a(f"s_lshr_b32 s{sT0}, s{sJ}, 2"); a(f"s_lshl_b32 s{sHF}, s{sKVH}, 3"); a(f"s_add_u32 s{sHF}, s{sHF}, s{sT0}")
        a(f"s_and_b32 s{sCQ}, s{sJ}, 3")
        a(f"s_getreg_b32 s{sXCC}, hwreg(HW_REG_XCC_ID, 0, 4)")
    if not lay2: hconst()
    a(f"s_cmp_ge_u32 s{sWAVE}, 2"); a("s_cbranch_scc1 L_H23")
    a("v_lshrrev_b32 v4, 3, v0"); a("v_and_b32 v5, 7, v0")
    a(f"s_cmp_eq_u32 s{sWAVE}, 1"); a("s_cbranch_scc1 L_H1a")
    def ln_loads(nblk, s_k0bytes):
        srd(sSRD2, sX, 4096)
        for i in range(4): a(f"buffer_load_dwordx4 {vr(XS+4*i,4)}, v160, s[{sSRD2}:{sSRD2+3}], 0 offen offset:{256*i}" + NT("x"))
        for B in range(nblk): a(f"buffer_load_dwordx4 {vr(XA+4*B,4)}, v161, s[{sSRD2}:{sSRD2+3}], s{s_k0bytes} offen offset:{128*B}")
    MEAN, RS = 162, 164
    def ln_stats():
        for i in range(16):
            a(f"v_lshlrev_b32 v{U+2*i}, 16, v{WD+i}"); a(f"v_and_b32 v{U+2*i+1}, 0xffff0000, v{WD+i}")
        for i in range(8): a(f"v_pk_add_f32 {vr(XS+2*i,2)}, {vr(U+4*i,2)}, {vr(U+4*i+2,2)}")
        for i in range(4): a(f"v_pk_add_f32 {vr(XS+2*i,2)}, {vr(XS+2*i,2)}, {vr(XS+8+2*i,2)}")
        for i in range(2): a(f"v_pk_add_f32 {vr(XS+2*i,2)}, {vr(XS+2*i,2)}, {vr(XS+4+2*i,2)}")
        a(f"v_pk_add_f32 {vr(XS,2)}, {vr(XS,2)}, {vr(XS+2,2)}")
        a(f"v_add_f32 v{MEAN}, v{XS}, v{XS+1}")
        allreduce("v_add_f32", MEAN, XS, ['r8', 'r4', 'r2', 'r1'])
        a(f"v_mul_f32 v{MEAN}, 0xbb000000, v{MEAN}")
        a(f"v_mov_b32 v{MEAN+1}, v{MEAN}")
        for i in range(16): a(f"v_pk_add_f32 {vr(U+2*i,2)}, {vr(U+2*i,2)}, {vr(MEAN,2)}")
        for i in range(4): a(f"v_pk_mul_f32 {vr(XS+2*i,2)}, {vr(U+2*i,2)}, {vr(U+2*i,2)}")
        for i in range(4, 16): a(f"v_pk_fma_f32 {vr(XS+2*(i&3),2)}, {vr(U+2*i,2)}, {vr(U+2*i,2)}, {vr(XS+2*(i&3),2)}")
        for i in range(2): a(f"v_pk_add_f32 {vr(XS+2*i,2)}, {vr(XS+2*i,2)}, {vr(XS+4+2*i,2)}")
        a(f"v_pk_add_f32 {vr(XS,2)}, {vr(XS,2)}, {vr(XS+2,2)}")
        a(f"v_add_f32 v{RS}, v{XS}, v{XS+1}")
        allreduce("v_add_f32", RS, XS, ['r8', 'r4', 'r2', 'r1'])
        a(f"v_mul_f32 v{RS}, 0x3b000000, v{RS}")
        rnd(RS)
        a(f"v_add_f32 v{RS}, 0x3727c5ac, v{RS}")
        rnd(RS)
        a(f"v_sqrt_f32 v{RS}, v{RS}")
        rnd(RS)
        a(f"v_rcp_f32 v{RS}, v{RS}")
        rnd(MEAN)
        a(f"v_mov_b32 v{MEAN+1}, v{MEAN}"); a(f"v_mov_b32 v{RS+1}, v{RS}")
    def ln_apply(src):
        for i in range(4):
            a(f"v_lshlrev_b32 v{U+2*i}, 16, v{src+i}"); a(f"v_and_b32 v{U+2*i+1}, 0xffff0000, v{src+i}")
        for i in range(4): a(f"v_pk_add_f32 {vr(U+2*i,2)}, {vr(U+2*i,2)}, {vr(MEAN,2)}")
        for i in range(4): a(f"v_cvt_pk_bf16_f32 v{src+i}, v{U+2*i}, v{U+2*i+1}")
        for i in range(4):
            a(f"v_lshlrev_b32 v{U+2*i}, 16, v{src+i}"); a(f"v_and_b32 v{U+2*i+1}, 0xffff0000, v{src+i}")
        for i in range(4): a(f"v_pk_mul_f32 {vr(U+2*i,2)}, {vr(U+2*i,2)}, {vr(RS,2)}")
        for i in range(4): a(f"v_cvt_pk_bf16_f32 v{src+i}, v{U+2*i}, v{U+2*i+1}")

    A16 = 8 + 16
    a("v_lshlrev_b32 v1, 16, v4"); a("v_lshl_add_u32 v1, v5, 4, v1")
    a(f"s_lshl_b32 s{sT1}, s{sB}, 8")
    a(f"s_lshl_b32 s{sT2}, s{sB}, 20"); a(f"s_lshl_b32 s{sT3}, s{sKVH}, 10"); a(f"s_add_u32 s{sT2}, s{sT2}, s{sT3}")
    a(f"s_lshl_b32 s{sT3}, s{sS}, 7"); a(f"s_add_u32 s{sT2}, s{sT2}, s{sT3}")
    a("s_waitcnt lgkmcnt(0)")
    dstamp(4)
    epoch_load()
    dstamp(6)
    srd(sSRD, sWQ, 0x400000)
    def wq_loads(B):
        for t in range(8):
            a(f"buffer_load_dwordx4 {vr(WD+32*B+4*t,4)}, v1, s[{sSRD}:{sSRD+3}], s{sT2} offen nt")
            if not (B == 1 and t == 7): a(f"s_add_u32 s{sT2}, s{sT2}, {8192 if t < 7 else 8192*57}")
    wq_loads(0)
    if wqs is None: wq_loads(1)
    bar()
    stamp(1)
    a("s_branch L_H0c"); section("H0c"); a("; ---- wave 0: q partials"); a.label("L_H0c")
    hconst()
    srd(sSRDW, sWS, WS_SIZE)
    if wqs is not None:
        a(f"s_waitcnt vmcnt({wqs})"); wq_loads(1)
    xn_addr(sT1)
    make_tag()
    a("v_lshrrev_b32 v4, 5, v0"); a("v_and_b32 v5, 31, v0")
    a("v_lshlrev_b32 v166, 14, v4"); a("v_lshl_add_u32 v166, v5, 4, v166")
    a("v_mul_u32_u24 v165, 12, v5"); a("v_lshl_add_u32 v165, v4, 8, v165")
    a(f"v_cmp_eq_u32 s[{sO}:{sO+1}], 21, v5")
    a(f"s_lshl_b32 s{sT4}, s{sKVH}, 16"); a(f"s_lshr_b32 s{sT3}, s{sS}, 1"); a(f"s_lshl_b32 s{sT3}, s{sT3}, 12"); a(f"s_add_u32 s{sT4}, s{sT4}, s{sT3}")
    a(f"s_lshl_b32 s{sT3}, s{sB}, 10"); a(f"s_add_u32 s{sT4}, s{sT4}, s{sT3}"); a(f"s_and_b32 s{sT3}, s{sS}, 1"); a(f"s_lshl_b32 s{sT3}, s{sT3}, 9")
    a(f"s_add_u32 s{sT4}, s{sT4}, s{sT3}"); a(f"s_add_u32 s{sT4}, s{sT4}, {QP}"); a(f"s_add_u32 s{sT5}, s{sT4}, {2*16384}")
    for i in range(2): a(f"v_mov_b32 v{U+4*i+3}, s{sTAG}")
    a(f"v_mov_b32 v{U+8}, s{sXCC}")
    a(f"v_add_u32 v167, {L_OS}, v165")
    lds_wait(F_XN, 1, sleep=1)
    stamp(5)
    for B in range(2):
        for v in range(2): a(f"ds_read_b128 {vr(XA+8*B+4*v,4)}, v{160+v} offset:{128*B}")
    a("s_waitcnt vmcnt(8) lgkmcnt(0)")
    block8(WD, XA, 16, A16, first=True)
    if not lateclr: lds_wait(F_CLR, 1, sleep=1)
    a("s_waitcnt vmcnt(0)")
    block8(WD + 32, XA + 8, 16, A16)
    dense8(A16)
    dense_to_lds(A16, L_OS)
    for i in range(2):
        a(f"ds_read2_b32 {vr(U+4*i,2)}, v167 offset0:{128*i} offset1:{128*i+1}")
        a(f"ds_read_b32 v{U+4*i+2}, v165 offset:{L_OS+512*i+8}")
    a("s_waitcnt lgkmcnt(0)")
    for i in range(2): a(f"v_cndmask_b32 v{U+4*i+1}, v{U+4*i+1}, v{U+8}, s[{sO}:{sO+1}]")
    def qp_store(fl):
        a("s_mov_b32 exec_lo, 0x00ffffff"); a("s_mov_b32 exec_hi, 0x00ffffff")
        a(f"buffer_store_dwordx4 {vr(U,4)}, v166, {WSRD}, s{sT4} offen" + fl)
        a(f"buffer_store_dwordx4 {vr(U+4,4)}, v166, {WSRD}, s{sT5} offen" + fl)
        a("s_mov_b64 exec, -1")
    qp_store("" if qpl else " sc1")
    stamp(2)
    if w1late == 1: lds_signal(F_P0)
    if not noack: a("s_waitcnt vmcnt(0)")
    lds_signal(F_P1)
    a("s_branch L_qgather")

    if layout: section("H")
    a.label("L_H1a")
    a(f"s_mov_b32 s{sT0}, {8*3584}"); a(f"v_mul_lo_u32 v1, v4, s{sT0}"); a("v_lshl_add_u32 v1, v5, 4, v1")
    def fbase(dst, tmp):
        a(f"s_lshr_b32 s{dst}, s{sKVH}, 1"); a(f"s_mul_i32 s{dst}, s{dst}, 7"); a(f"s_and_b32 s{tmp}, s{sKVH}, 1"); a(f"s_mul_i32 s{tmp}, s{tmp}, {3 if heavy else 4}"); a(f"s_add_u32 s{dst}, s{dst}, s{tmp}")
    def light_scc():
        a(f"s_bitcmp{0 if heavy else 1}_b32 s{sKVH}, 0")
    if al:
        light_scc(); a(f"s_cselect_b32 s{sT0}, 3, 4"); a(f"s_cmp_ge_u32 s{sB}, s{sT0}"); a("s_cselect_b64 vcc, -1, 0")
        a("v_mov_b32 v4, 0x40000000"); a("v_cndmask_b32 v1, v1, v4, vcc")
        fbase(sT0, sT3); a(f"s_add_u32 s{sT0}, s{sT0}, s{sB}"); a(f"s_lshl_b32 s{sT3}, s{sT0}, 7")
    else:
        a("v_cmp_eq_u32 vcc, 7, v5"); a("v_mov_b32 v4, 0x40000000"); a("v_cndmask_b32 v1, v1, v4, vcc")
        a(f"s_lshl_b32 s{sT0}, s{sKVH}, 2"); a(f"s_add_u32 s{sT0}, s{sT0}, s{sB}"); a(f"s_mul_i32 s{sT3}, s{sT0}, 112")
    a(f"s_lshl_b32 s{sT1}, s{sS}, 7")
    a(f"s_mul_i32 s{sT2}, s{sS}, {64*3584}"); a(f"s_add_u32 s{sT2}, s{sT2}, s{sT3}")
    a("s_waitcnt lgkmcnt(0)")
    epoch_load()
    def w1_loads():
        for t in range(8):
            a(f"buffer_load_dwordx4 {vr(WD+4*t,4)}, v1, s[{sSRD}:{sSRD+3}], s{sT2} offen nt")
            if t < 7: a(f"s_add_u32 s{sT2}, s{sT2}, 3584")
    srd(sSRD, sW1, 512 * 3584)
    w1_loads()
    bar()
    stamp(1)
    a("s_branch L_H1c"); section("H1c"); a("; ---- wave 1: hidden partials"); a.label("L_H1c")
    hconst()
    srd(sSRDW, sWS, WS_SIZE)
    xn_addr(sT1)
    make_tag()
    a(f"s_lshl_b32 s{sO}, s{sKVH}, 5"); a(f"s_add_u32 s{sO}, s{sO}, s{sJ}"); a(f"s_lshl_b32 s{sO}, s{sO}, 10"); a(f"s_add_u32 s{sO}, s{sO}, {HP}")
    a("v_lshlrev_b32 v166, 4, v0")
    lds_wait(F_XN, 1, sleep=1)
    for v in range(2): a(f"ds_read_b128 {vr(XA+4*v,4)}, v{160+v}")
    a("s_waitcnt vmcnt(0) lgkmcnt(0)")
    block8(WD, XA, 16, A16, first=True)
    dense8(A16)
    dense_to_lds(A16, L_OS + 2048)
    a(f"ds_read_b128 {vr(XA,4)}, v166 offset:{L_OS+2048}")
    a("s_waitcnt lgkmcnt(0)")
    bytetag(XA, 4)
    if opt:
        a(f"s_add_u32 s{sO+1}, s{sO}, {OP - HP}")
        for i in range(4): a(f"v_mov_b32 v{XA+4+i}, -1")
        a(f"buffer_store_dwordx4 {vr(XA,4)}, v166, {WSRD}, s{sO} offen")
        a(f"buffer_store_dwordx4 {vr(XA+4,4)}, v166, {WSRD}, s{sO+1} offen")
    stamp(2)
    a("s_branch L_qwait")

    if layout: section("H")
    a.label("L_H23")
    a("s_waitcnt lgkmcnt(0)")
    epoch_load()
    a(f"s_cmp_eq_u32 s{sWAVE}, 3"); a("s_cbranch_scc1 L_H3a")
    srd(sSRDW, sWS, WS_SIZE)
    for i in range(4): a(f"v_mov_b32 v{BT+i}, -1")
    a("v_lshlrev_b32 v1, 4, v0")
    a(f"s_lshl_b32 s{sT1}, s{sKVH}, 5"); a(f"s_add_u32 s{sT1}, s{sT1}, s{sJ}")
    a(f"s_lshl_b32 s{sT2}, s{sT1}, 10"); a(f"s_add_u32 s{sT2}, s{sT2}, {OP}")
    if not lateclr: a(f"buffer_store_dwordx4 {vr(BT,4)}, v1, {WSRD}, s{sT2} offen sc1" + NT("clr"))
    if warm:
        a(f"s_cmp_ge_u32 s{sJ}, (L_exit - L_H3c) / 1024"); a("s_cbranch_scc1 L_nowarm")
        a(f"s_getpc_b64 s[{sT0}:{sT1}]")
        a.label("L_pc")
        a(f"s_add_u32 s{sT0}, s{sT0}, L_exit - L_pc - 1024"); a(f"s_addc_u32 s{sT1}, s{sT1}, 0")
        a(f"s_lshl_b32 s{sT2}, s{sJ}, 10"); a(f"s_sub_u32 s{sT0}, s{sT0}, s{sT2}"); a(f"s_subb_u32 s{sT1}, s{sT1}, 0")
        a("v_lshlrev_b32 v1, 4, v0")
        a(f"global_load_dwordx4 v[8:11], v1, s[{sT0}:{sT1}]")
        a.label("L_nowarm")
    if combine:
        for i in range(2): a(f"ds_write_b128 v1, {vr(BT,4)} offset:{L_X+1024*i}")
        if w2late:
            for i in range(2): a(f"ds_write_b128 v1, {vr(BT,4)} offset:{L_M+1024*i}")
    bar()
    if not lateclr:
        a("s_waitcnt vmcnt(0)")
        lds_signal(F_CLR)
    a("s_branch L_H23b")
    a.label("L_H3a")
    a("v_lshlrev_b32 v160, 10, v2"); a("v_lshl_add_u32 v160, v3, 4, v160")
    srd(sSRD2, sX, 4096)
    for i in range(4): a(f"buffer_load_dwordx4 {vr(WD+4*i,4)}, v160, s[{sSRD2}:{sSRD2+3}], 0 offen offset:{256*i}")
    bar()
    a("s_branch L_H3c"); section("H3c"); a("; ---- wave 3: LayerNorm"); a.label("L_H3c")
    srd(sSRDW, sWS, WS_SIZE)
    a("s_waitcnt vmcnt(0)")
    ln_stats()
    for i in range(4):
        ln_apply(WD + 4*i)
        a(f"ds_write_b128 v160, {vr(WD+4*i,4)} offset:{L_XN+256*i}")
    lds_signal(F_XN)
    a.label("L_H23b")
    if lay2: hconst()
    stamp(1)
    make_tag()
    if layout: a("s_branch L_qwait"); section("rest")
    a.label("L_qwait")
    lds_wait(F_P1, 1, sleep=2)
    a("; ---- helpers: gather q (one head each)"); a.label("L_qgather")
    stamp(3)
    a("v_lshlrev_b32 v1, 4, v0")
    a(f"s_lshl_b32 s{sT1}, s{sKVH}, 2"); a(f"s_add_u32 s{sT1}, s{sT1}, s{sB}"); a(f"s_lshl_b32 s{sT1}, s{sT1}, 2")
    a(f"s_add_u32 s{sT1}, s{sT1}, s{sWAVE}"); a(f"s_lshl_b32 s{sT1}, s{sT1}, 12"); a(f"s_add_u32 s{sT1}, s{sT1}, {QP}")
    a("v_and_b32 v5, 31, v0"); a("v_mul_u32_u24 v33, 6, v5"); a("v_lshrrev_b32 v5, 5, v0"); a("v_lshl_add_u32 v33, v5, 7, v33")
    a(f"s_lshl_b32 s{sT3}, s{sWAVE}, 8"); a(f"v_add_u32 v33, s{sT3}, v33")
    a(f"s_mov_b32 s{sMIX}, 0")
    a("s_mov_b32 exec_lo, 0x003fffff"); a("s_mov_b32 exec_hi, 0x003fffff")
    L = lab("poll"); a.label(L)
    for u in range(4): a(f"buffer_load_dwordx4 {vr(WD+4*u,4)}, v1, {WSRD}, s{sT1} offen offset:{1024*u} sc1")
    a("s_waitcnt vmcnt(0)")
    for u in range(4): a(f"v_xor_b32 v{WD+4*u+3}, s{sTAG}, v{WD+4*u+3}")
    a(f"v_or3_b32 v5, v{WD+3}, v{WD+7}, v{WD+11}"); a(f"v_or_b32 v5, v5, v{WD+15}")
    a("v_cmp_ne_u32 vcc, 0, v5")
    if qpl:
        def need_check(done):
            a(f"global_load_dword v5, v34, s[{sDBG}:{sDBG+1}] sc1"); a("s_waitcnt vmcnt(0)"); a(f"v_readfirstlane_b32 s{sT0}, v5")
            a(f"s_cmp_eq_u32 s{sT0}, 0"); a(f"s_cbranch_scc1 {done}")
            qp_store(" sc1")
        a("s_cbranch_vccz L_qok")
        a(f"s_mov_b64 s[{sM1}:{sM1+1}], vcc"); a("s_mov_b64 exec, -1")
        a(f"s_lshl_b32 s{sT0}, s{sKVH}, 2"); a(f"v_mov_b32 v34, s{sT0}")
        a(f"s_add_u32 s{sMIX}, s{sMIX}, 1"); a(f"s_cmp_lt_u32 s{sMIX}, 3"); a("s_cbranch_scc1 L_qagain")
        a("s_mov_b64 exec, 1"); a(f"global_store_dword v34, v{vONE}, s[{sDBG}:{sDBG+1}] sc1"); a("s_mov_b64 exec, -1")
        a(f"s_cmp_lg_u32 s{sWAVE}, 0"); a("s_cbranch_scc1 L_qagain")
        qp_store(" sc1")
        a.label("L_qagain")
        a(f"s_mov_b64 exec, s[{sM1}:{sM1+1}]")
        a("s_sleep 2"); a(f"s_sub_u32 s{sCNT}, s{sCNT}, 1"); a(f"s_cbranch_scc0 {L}"); a("s_endpgm")
        a.label("L_qok")
    else: retry(L, sleep=2, masked=True)
    if fast:
        a("s_mov_b32 exec_lo, 0x00200000"); a("s_mov_b32 exec_hi, 0x00200000")
        for u in range(4): a(f"v_xor_b32 v{BT+u}, s{sXCC}, v{WD+4*u+1}")
        a(f"v_or3_b32 v5, v{BT}, v{BT+1}, v{BT+2}"); a(f"v_or_b32 v5, v5, v{BT+3}")
        a("v_cmp_ne_u32 vcc, 0, v5"); a("s_cbranch_vccz L_uniform")
        lds_signal(F_MIX)
        a.label("L_uniform")
    a("s_mov_b32 exec_lo, 0x003fffff"); a("s_mov_b32 exec_hi, 0x003fffff")
    for k in range(3):
        a(f"v_add_f32 v{WD+k}, v{WD+k}, v{WD+4+k}"); a(f"v_add_f32 v{WD+8+k}, v{WD+8+k}, v{WD+12+k}")
    for k in range(3): a(f"v_add_f32 v{WD+k}, v{WD+k}, v{WD+8+k}")
    a(f"v_cvt_pk_bf16_f32 v{WD}, v{WD}, v{WD+1}"); a(f"v_cvt_pk_bf16_f32 v{WD+2}, v{WD+2}, v{WD+2}")
    a(f"ds_write_b16 v33, v{WD} offset:{L_Q}")
    a("s_mov_b32 exec_lo, 0x001fffff"); a("s_mov_b32 exec_hi, 0x001fffff")
    a(f"ds_write_b16_d16_hi v33, v{WD} offset:{L_Q+2}"); a(f"ds_write_b16 v33, v{WD+2} offset:{L_Q+4}")
    lds_signal(F_Q)
    stamp(4)
    a(f"s_cmp_eq_u32 s{sWAVE}, 2"); a("s_cbranch_scc1 L_H2b")
    a(f"s_cmp_eq_u32 s{sWAVE}, 3"); a("s_cbranch_scc1 L_H3b")
    a("v_lshlrev_b32 v1, 13, v2"); a("v_lshl_add_u32 v1, v3, 4, v1")
    a(f"s_cmp_eq_u32 s{sWAVE}, 1"); a("s_cbranch_scc1 L_H1b")
    if qpl:
        a(f"s_lshl_b32 s{sT0}, s{sKVH}, 2"); a(f"v_mov_b32 v34, s{sT0}"); a(f"s_mov_b32 s{sT1}, 0")
        a.label("L_watch")
        a(f"ds_read_b32 v5, v{vZ} offset:{F_Q*4}"); a("s_waitcnt lgkmcnt(0)"); a(f"v_readfirstlane_b32 s{sT0}, v5")
        a(f"s_cmp_ge_u32 s{sT0}, 4"); a("s_cbranch_scc1 L_wdone")
        a("s_sleep 4"); a(f"s_add_u32 s{sT1}, s{sT1}, 1"); a(f"s_and_b32 s{sT0}, s{sT1}, 31"); a(f"s_cbranch_scc1 L_wnext")
        need_check("L_wnext")
        a.label("L_wnext")
        a(f"s_sub_u32 s{sCNT}, s{sCNT}, 1"); a("s_cbranch_scc0 L_watch"); a("s_endpgm")
        a.label("L_wdone")
        read_mix(5)
        a(f"s_cmp_eq_u32 s{sMIX}, 0"); a("s_cbranch_scc1 L_proj")
        qp_store(" sc1")
    a("s_branch L_proj")
    a.label("L_H1b")
    assert opt and h1clr
    lds_wait(F_Q, 4, sleep=2)
    read_mix(5)
    a(f"s_cmp_eq_u32 s{sMIX}, 0"); a("s_cbranch_scc1 L_h1u")
    a(f"buffer_store_dwordx4 {vr(XA,4)}, v166, {WSRD}, s{sO} offen sc1")
    a(f"buffer_store_dwordx4 {vr(XA+4,4)}, v166, {WSRD}, s{sO+1} offen sc1")
    a.label("L_h1u")
    a("s_waitcnt vmcnt(0)")
    lds_signal(F_CLR)
    if late_hp and not h1clr:
        lds_wait(F_Q, 4, sleep=2)
        read_mix(5)
        a("v_lshlrev_b32 v166, 4, v0")
        group_store(f"buffer_store_dwordx4 {vr(XA,4)}, v166, {WSRD}, s{sO} offen")
    a("; ---- waves 0/1: output projection"); a.label("L_proj")
    assert combine
    BW, G, SU, AA = 104, 72, 80, 96
    srd(sSRD, sWO, 0x400000)
    a(f"s_lshl_b32 s{sDB}, s{sHF}, 1"); a(f"s_add_u32 s{sDB}, s{sDB}, s{sWAVE}")
    a(f"s_lshl_b32 s{sO}, s{sDB}, 15"); a(f"s_lshl_b32 s{sT2}, s{sCQ}, 8"); a(f"s_add_u32 s{sO}, s{sO}, s{sT2}"); a(f"s_add_u32 s{sO+1}, s{sO}, 4096")
    a("v_bfe_u32 v4, v0, 2, 2"); a("v_and_b32 v5, 3, v0")
    a("v_lshlrev_b32 v137, 10, v4"); a("v_lshl_add_u32 v137, v2, 7, v137")
    a(f"s_lshl_b32 s{sO+2}, s{sKVH}, 12"); a(f"s_bfe_u32 s{sT2}, s{sHF}, 0x10002"); a(f"s_lshl_b32 s{sT2}, s{sT2}, 4")
    a(f"s_add_u32 s{sO+2}, s{sO+2}, s{sT2}"); a(f"s_add_u32 s{sO+2}, s{sO+2}, {ST}")
    a("v_lshlrev_b32 v100, 13, v4"); a("v_lshl_add_u32 v100, v2, 10, v100"); a("v_lshl_add_u32 v100, v5, 4, v100")
    a(f"s_lshl_b32 s{sT3}, s{sKVH}, 15"); a(f"s_and_b32 s{sT4}, s{sDB}, 15"); a(f"s_lshl_b32 s{sT4}, s{sT4}, 6")
    a(f"s_add_u32 s{sT3}, s{sT3}, s{sT4}"); a(f"s_add_u32 s{sT3}, s{sT3}, {OP}"); a(f"s_add_u32 s{sT4}, s{sT3}, 4096")
    a(f"s_lshl_b32 s{sT1}, s{sWAVE}, 8"); a(f"s_add_u32 s{sT1}, s{sT1}, {L_AO}")
    a("v_lshlrev_b32 v101, 6, v4"); a("v_lshl_add_u32 v101, v5, 4, v101"); a("v_lshl_add_u32 v101, v2, 2, v101"); a(f"v_add_u32 v101, s{sT1}, v101")
    a("v_lshlrev_b32 v5, 6, v5"); a("v_lshl_add_u32 v5, v2, 4, v5"); a(f"v_add_u32 v5, s{sT1}, v5"); a(f"v_mov_b32 v4, {L_ZERO}")
    for g in range(4): a(f"v_cndmask_b32 v{AA+g}, v4, v5, s[{sM+2*g}:{sM+2*g+1}]")
    a("v_lshlrev_b32 v138, 4, v0")
    if numa:
        a(f"s_lshl_b32 s{sT2}, s{sCQ}, 18"); a(f"s_lshr_b32 s{sT1}, s{sDB}, 3"); a(f"s_lshl_b32 s{sT1}, s{sT1}, 14"); a(f"s_add_u32 s{sT2}, s{sT2}, s{sT1}")
        a(f"s_and_b32 s{sT1}, s{sDB}, 7"); a(f"s_lshl_b32 s{sT1}, s{sT1}, 10")
    else:
        a(f"s_lshl_b32 s{sT2}, s{sCQ}, 17"); a(f"s_lshl_b32 s{sT1}, s{sDB}, 10")
    a(f"s_add_u32 s{sT5}, s{sT1}, s{sT2}"); a(f"s_add_u32 s{sT5}, s{sT5}, {FP}"); a(f"s_add_u32 s{sO+3}, s{sT5}, 8192")
    a(f"s_lshl_b32 s{sT1}, s{sWAVE}, 10"); a(f"v_add_u32 v103, s{sT1}, v138"); a(f"v_xor_b32 v136, 1024, v103")
    a(f"v_mov_b32 v102, s{sHI}")
    if own_touch and "fp" in touch: a(f"buffer_load_dwordx4 {vr(G,4)}, v138, {WSRD}, s{sT5} offen")
    if "wo" in touch:
        a("s_mov_b64 exec, 1"); a(f"buffer_load_dword v139, v{vZ}, s[{sSRD}:{sSRD+3}], s{sO} offen nt"); a("s_mov_b64 exec, -1")
    lds_wait(F_FW, 1, sleep=4)
    if wo_sig is not None: lds_wait(F_WO, 1, sleep=1)
    if stfirst:
        a("s_setprio 3")
        def st_loads():
            for u in range(2): a(f"buffer_load_dwordx4 {vr(144+4*u,4)}, v137, {WSRD}, s{sO+2} offen offset:{512*u} sc1")
        def op_loads():
            for u in range(2): a(f"buffer_load_dwordx4 {vr(G+4*u,4)}, v100, {WSRD}, s{sT3+u} offen sc1")
        def weights():
            E = lab("ev")
            a(f"s_bitcmp1_b32 s{sHF}, 1"); a(f"s_cbranch_scc0 {E}")
            for u in range(2):
                a(f"v_mov_b32 v{144+4*u}, v{146+4*u}"); a(f"v_mov_b32 v{145+4*u}, v{147+4*u}")
            a.label(E)
            a("v_max_f32 v146, v144, v148")
            allreduce("v_max_f32", 146, 147, ['p16', 'p32'])
            a(f"s_mov_b32 s{sT0}, 0x3fb8aa3b")
            a("v_sub_f32 v144, v144, v146"); a("v_sub_f32 v148, v148, v146")
            a(f"v_mul_f32 v144, s{sT0}, v144"); a(f"v_mul_f32 v148, s{sT0}, v148")
            a("v_exp_f32 v144, v144"); a("v_exp_f32 v148, v148")
            a("v_mul_f32 v146, v144, v145"); a("v_fmac_f32 v146, v148, v149")
            allreduce("v_add_f32", 146, 147, ['p16', 'p32'])
            a("v_rcp_f32 v146, v146")
            a("v_mul_f32 v140, v144, v146"); a("v_mul_f32 v142, v148, v146")
            a("v_mov_b32 v141, v140"); a("v_mov_b32 v143, v142")
        st_loads()
        for t in range(8):
            a(f"buffer_load_dwordx4 {vr(WD+4*t,4)}, v1, s[{sSRD}:{sSRD+3}], s{sO + (t >> 2)} offen offset:{(t&3)*1024} nt")
        lds_wait(F_MLP, 1, sleep=1)
        for i in range(4): a(f"v_mov_b32 v{SU+i}, 0")
        a(f"ds_read_b128 {vr(SU+4,4)}, v103 offset:{L_M}")
        a("s_waitcnt lgkmcnt(0)")
        a(f"s_cmp_eq_u32 s{sWAVE}, 1"); a(f"s_cselect_b64 vcc, -1, 0")
        for i in range(4):
            a(f"v_cndmask_b32 v{ACC+i}, v{SU+4+i}, v{SU+i}, vcc"); a(f"v_cndmask_b32 v{ACC+4+i}, v{SU+i}, v{SU+4+i}, vcc")
        a("s_waitcnt vmcnt(8)")
        untag(144, 8, 5)
        a(f"s_mov_b64 s[{sM1}:{sM1+1}], vcc")
        a("s_cbranch_vccnz L_stmiss")
        op_loads()
        weights()
        a("s_branch L_perms")
        a.label("L_stmiss")
        a("s_mov_b64 exec, vcc")
        st_loads()
        a("s_mov_b64 exec, -1")
        a.label("L_perms")
        for m in range(4):
            a(f"s_waitcnt vmcnt({8-2*m})")
            for e in range(8):
                a(f"v_perm_b32 v{BW+4*e+m}, v{WD+4*(2*m+1)+(e>>1)}, v{WD+4*(2*m)+(e>>1)}, s{sSELHI if e & 1 else sSELLO}")
        a(f"s_cmp_eq_u64 s[{sM1}:{sM1+1}], 0"); a("s_cbranch_scc1 L_stok")
        a(f"s_mov_b64 exec, s[{sM1}:{sM1+1}]")
        a("s_branch L_stchk")
        L = lab("poll"); a.label(L)
        st_loads()
        a.label("L_stchk")
        a("s_waitcnt vmcnt(0)")
        untag(144, 8, 5)
        retry(L, sleep=4, masked=True)
        op_loads()
        weights()
        a.label("L_stok")
    else:
        a("s_setprio 3")
        for t in range(8):
            a(f"buffer_load_dwordx4 {vr(WD+4*t,4)}, v1, s[{sSRD}:{sSRD+3}], s{sO + (t >> 2)} offen offset:{(t&3)*1024} nt")
        for u in range(2): a(f"buffer_load_dwordx4 {vr(144+4*u,4)}, v137, {WSRD}, s{sO+2} offen offset:{512*u} sc1")
        if w2late:
            if w2_sig is None: lds_signal(F_W2)
            for i in range(8): a(f"v_mov_b32 v{ACC+i}, 0")
        else:
            lds_wait(F_MLP, 1, sleep=1)
            for i in range(4): a(f"v_mov_b32 v{SU+i}, 0")
            a(f"ds_read_b128 {vr(SU+4,4)}, v103 offset:{L_M}")
            a("s_waitcnt lgkmcnt(0)")
            a(f"s_cmp_eq_u32 s{sWAVE}, 1"); a(f"s_cselect_b64 vcc, -1, 0")
            for i in range(4):
                a(f"v_cndmask_b32 v{ACC+i}, v{SU+4+i}, v{SU+i}, vcc"); a(f"v_cndmask_b32 v{ACC+4+i}, v{SU+i}, v{SU+4+i}, vcc")
        for m in range(4):
            a(f"s_waitcnt vmcnt({8-2*m})")
            for e in range(8):
                a(f"v_perm_b32 v{BW+4*e+m}, v{WD+4*(2*m+1)+(e>>1)}, v{WD+4*(2*m)+(e>>1)}, s{sSELHI if e & 1 else sSELLO}")
        a("s_branch L_stchk")
        L = lab("poll"); a.label(L)
        for u in range(2): a(f"buffer_load_dwordx4 {vr(144+4*u,4)}, v137, {WSRD}, s{sO+2} offen offset:{512*u} sc1")
        a.label("L_stchk")
        a("s_waitcnt vmcnt(0)")
        untag(144, 8, 5)
        retry(L, sleep=4, masked=True)
        for u in range(2): a(f"buffer_load_dwordx4 {vr(G+4*u,4)}, v100, {WSRD}, s{sT3+u} offen sc1")
        a(f"s_bitcmp1_b32 s{sHF}, 1"); a("s_cbranch_scc0 L_evenh")
        for u in range(2):
            a(f"v_mov_b32 v{144+4*u}, v{146+4*u}"); a(f"v_mov_b32 v{145+4*u}, v{147+4*u}")
        a.label("L_evenh")
        a("v_max_f32 v146, v144, v148")
        allreduce("v_max_f32", 146, 147, ['p16', 'p32'])
        a(f"s_mov_b32 s{sT0}, 0x3fb8aa3b")
        a("v_sub_f32 v144, v144, v146"); a("v_sub_f32 v148, v148, v146")
        a(f"v_mul_f32 v144, s{sT0}, v144"); a(f"v_mul_f32 v148, s{sT0}, v148")
        a("v_exp_f32 v144, v144"); a("v_exp_f32 v148, v148")
        a("v_mul_f32 v146, v144, v145"); a("v_fmac_f32 v146, v148, v149")
        allreduce("v_add_f32", 146, 147, ['p16', 'p32'])
        a("v_rcp_f32 v146, v146")
        a("v_mul_f32 v140, v144, v146"); a("v_mul_f32 v142, v148, v146")
        a("v_mov_b32 v141, v140"); a("v_mov_b32 v143, v142")
    stamp(3)
    a("s_branch L_opchk")
    L = lab("poll"); a.label(L)
    for u in range(2): a(f"buffer_load_dwordx4 {vr(G+4*u,4)}, v100, {WSRD}, s{sT3+u} offen sc1")
    a.label("L_opchk")
    a("s_waitcnt vmcnt(0)")
    a(f"v_max3_u32 v4, v{G}, v{G+1}, v{G+2}"); a(f"v_max3_u32 v5, v{G+3}, v{G+4}, v{G+5}")
    a(f"v_max3_u32 v4, v4, v{G+6}, v{G+7}"); a("v_max_u32 v4, v4, v5")
    a("v_cmp_eq_u32 vcc, -1, v4")
    retry(L, masked=True)
    stamp(6)
    for i in range(4):
        a(f"v_lshlrev_b32 v{SU+2*i}, 16, v{G+i}"); a(f"v_and_b32 v{SU+2*i+1}, 0xffff0000, v{G+i}")
    for i in range(4):
        a(f"v_lshlrev_b32 v{SU+8+2*i}, 16, v{G+4+i}"); a(f"v_and_b32 v{SU+8+2*i+1}, 0xffff0000, v{G+4+i}")
        a(f"v_pk_mul_f32 {vr(SU+2*i,2)}, {vr(SU+2*i,2)}, v[140:141]")
    for i in range(4): a(f"v_pk_fma_f32 {vr(SU+2*i,2)}, {vr(SU+8+2*i,2)}, v[142:143], {vr(SU+2*i,2)}")
    reduce8to2(SU)
    a(f"v_cvt_pk_bf16_f32 v5, v{SU}, v{SU+1}")
    a("ds_write_b32 v101, v5")
    for g in range(4): a(f"ds_read_b128 {vr(AV+4*g,4)}, v{AA+g}")
    a(f"s_cmp_eq_u32 s{sWAVE}, 1"); a("s_cbranch_scc1 L_keep1")
    for keep in range(2):
        if keep == 1: a.label("L_keep1")
        give = 1 - keep
        for n in range(8):
            ac = give if n < 4 else keep
            g = n & 3
            if n < 4: a(f"s_waitcnt lgkmcnt({3-g})")
            a(f"v_mfma_f32_16x16x32_bf16 {vr(ACC+4*ac,4)}, {vr(AV+4*g,4)}, {vr(BW+4*(4*ac+g),4)}, {vr(ACC+4*ac,4)}")
        for i in range(4): a(f"v_min_u32 v{ACC+4*give+i}, 0xfffffffe, v{ACC+4*give+i}")
        a(f"ds_write_b128 v136, {vr(ACC+4*give,4)} offset:{L_X}")
        L = lab("xp"); a.label(L)
        a(f"ds_read_b128 {vr(G,4)}, v103 offset:{L_X}")
        if w2late: a(f"ds_read_b128 {vr(G+4,4)}, v103 offset:{L_M}")
        a("s_waitcnt lgkmcnt(0)")
        if w2late:
            a(f"v_max3_u32 v4, v{G}, v{G+1}, v{G+2}"); a(f"v_max3_u32 v5, v{G+3}, v{G+4}, v{G+5}"); a(f"v_max3_u32 v4, v4, v{G+6}, v{G+7}"); a("v_max_u32 v4, v4, v5")
        else:
            a(f"v_max3_u32 v4, v{G}, v{G+1}, v{G+2}"); a(f"v_max_u32 v4, v4, v{G+3}")
        a("v_cmp_eq_u32 vcc, -1, v4")
        retry(L)
        if w2late:
            for i in (0, 2): a(f"v_pk_add_f32 {vr(G+i,2)}, {vr(G+4+i,2)}, {vr(G+i,2)}")
        for i in (0, 2): a(f"v_pk_add_f32 {vr(G+i,2)}, {vr(ACC+4*keep+i,2)}, {vr(G+i,2)}")
        for i in range(4): a(f"v_and_or_b32 v{G+i}, v{G+i}, v102, s{sTB+(i&3)}")
        a(f"buffer_store_dwordx4 {vr(G,4)}, v138, {WSRD}, s{sT5} offen sc1")
        if numa: a(f"buffer_store_dwordx4 {vr(G,4)}, v138, {WSRD}, s{sO+3} offen sc1")
        lds_signal(F_FP)
        stamp(7)
        finish_wave()

    a("; ---- wave 3: workgroup statistics"); a.label("L_H3b")
    a("v_and_b32 v4, 7, v0"); a("v_lshlrev_b32 v1, 4, v4"); a("v_lshlrev_b32 v4, 3, v4")
    a(f"s_lshl_b32 s{sT1}, s{sKVH}, 5"); a(f"s_add_u32 s{sT1}, s{sT1}, s{sJ}"); a(f"s_lshl_b32 s{sT1}, s{sT1}, 7"); a(f"s_add_u32 s{sT1}, s{sT1}, {ST}")
    lds_wait(F_STAT, 4, sleep=2)
    if fast: read_mix(5)
    if lateclr: lds_wait(F_CLR, 1, sleep=2)
    stamp(5)
    a(f"ds_read_b128 v[8:11], v1 offset:{L_ST}")
    a("s_waitcnt lgkmcnt(0)")
    a("v_mov_b32 v12, v8"); a("v_mov_b32 v14, v10")
    for x in (12, 14): allreduce("v_max_f32", x, 16, ['q2', 'r4'])
    a(f"s_mov_b32 s{sT0}, 0x3fb8aa3b")
    a("v_sub_f32 v8, v8, v12"); a("v_sub_f32 v10, v10, v14")
    a(f"v_mul_f32 v8, s{sT0}, v8"); a(f"v_mul_f32 v10, s{sT0}, v10")
    a("v_exp_f32 v16, v8"); a("v_exp_f32 v17, v10")
    a("v_mul_f32 v13, v16, v9"); a("v_mul_f32 v15, v17, v11")
    a(f"ds_write_b64 v4, v[16:17] offset:{L_FW}")
    for x in (13, 15): allreduce("v_add_f32", x, 18, ['q2', 'r4'])
    bytetag(12, 4)
    a("s_mov_b64 exec, 3")
    group_store(f"buffer_store_dwordx4 v[12:15], v1, {WSRD}, s{sT1} offen")
    lds_signal(F_FW)
    if two: a("s_branch L_final")
    else:
        stamp(6); stamp(7)
        finish_wave()

    a("; ---- wave 2: MLP second half"); a.label("L_H2b")
    if lateclr and not h1clr:
        a(f"s_lshl_b32 s{sT1}, s{sKVH}, 5"); a(f"s_add_u32 s{sT1}, s{sT1}, s{sJ}"); a(f"s_lshl_b32 s{sT2}, s{sT1}, 10"); a(f"s_add_u32 s{sT2}, s{sT2}, {OP}")
        for i in range(4): a(f"v_mov_b32 v{BT+i}, -1")
        lds_wait(F_Q, 4, sleep=2)
        read_mix(5)
        group_store(f"buffer_store_dwordx4 {vr(BT,4)}, v1, {WSRD}, s{sT2} offen")
    assert lateclr
    a("v_lshlrev_b32 v1, 13, v2"); a("v_lshl_add_u32 v1, v3, 4, v1")
    HG = WD + 32
    srd(sSRD, sW2, 1792 * 1024)
    if al:
        light_scc(); a(f"s_cselect_b32 s{sT3}, 3, 4")
        a(f"v_cmp_le_u32 vcc, s{sT3}, v2"); a("v_mov_b32 v5, 0x40000000"); a("v_cndmask_b32 v1, v1, v5, vcc"); a("v_mov_b32 v5, v1")
        a(f"s_and_b32 s{sT4}, s{sHF}, 7"); a(f"s_mul_i32 s{sT4}, s{sT4}, s{sT3}"); a(f"s_lshl_b32 s{sT4}, s{sT4}, 3")
        fbase(sT1, sT2); a(f"s_lshl_b32 s{sT1}, s{sT1}, 6"); a(f"s_add_u32 s{sT1}, s{sT1}, s{sT4}"); a(f"s_lshl_b32 s{sT1}, s{sT1}, 10")
    else:
        a("v_cmp_eq_u32 vcc, 3, v2"); a("v_mov_b32 v5, 0x40000000"); a("v_cndmask_b32 v5, v1, v5, vcc")
        a(f"s_mul_i32 s{sT1}, s{sHF}, {28*1024}")
    a(f"s_lshl_b32 s{sT2}, s{sCQ}, 8"); a(f"s_add_u32 s{sT1}, s{sT1}, s{sT2}"); a(f"s_add_u32 s{sT2}, s{sT1}, 4096")
    W2S = 64
    def w2_loads(srd_, o0, o1, va, vb):
        for t in range(8):
            a(f"buffer_load_dwordx4 {vr(104+4*t if w2late else WD+4*t,4)}, v{va if t < 4 else vb}, s[{srd_}:{srd_+3}], s{o0 if t < 4 else o1} offen offset:{(t&3)*1024} nt")
    if w2late:
        srd(W2S, sW2, 1792 * 1024); a(f"s_mov_b32 s{W2S+4}, s{sT1}"); a(f"s_mov_b32 s{W2S+5}, s{sT2}"); a("v_mov_b32 v138, v1"); a("v_mov_b32 v139, v5")
    else: w2_loads(sSRD, sT1, sT2, 1, 5)
    a("v_lshrrev_b32 v4, 3, v0"); a("v_lshlrev_b32 v4, 10, v4")
    a("v_and_b32 v33, 7, v0")
    if al:
        a(f"s_lshl_b32 s{sT3}, s{sT3}, 1"); a(f"s_sub_u32 s{sT2}, s{sT3}, 1"); a(f"v_min_u32 v5, s{sT2}, v33"); a("v_lshlrev_b32 v5, 2, v5"); a(f"v_add_u32 v5, s{sT4}, v5")
        a("v_lshrrev_b32 v34, 6, v5"); a("v_lshl_add_u32 v4, v34, 13, v4"); a("v_and_b32 v5, 63, v5"); a("v_lshl_add_u32 v4, v5, 2, v4")
        a(f"s_lshl_b32 s{sT1}, s{sKVH}, 15"); a(f"s_add_u32 s{sT1}, s{sT1}, {HP}")
    else:
        a("v_min_u32 v5, 6, v33"); a("v_lshl_add_u32 v4, v5, 4, v4")
        a(f"s_lshr_b32 s{sT1}, s{sHF}, 1"); a(f"s_lshl_b32 s{sT1}, s{sT1}, 13"); a(f"s_and_b32 s{sT2}, s{sHF}, 1"); a(f"s_mul_i32 s{sT2}, s{sT2}, 112")
        a(f"s_add_u32 s{sT1}, s{sT1}, s{sT2}"); a(f"s_add_u32 s{sT1}, s{sT1}, {HP}")
    if not h1clr:
        a("s_waitcnt vmcnt(8)")
        lds_signal(F_CLR)
    L = lab("poll"); a.label(L)
    for u in range(4): a(f"buffer_load_dwordx4 {vr(HG+16+4*u,4)}, v4, {WSRD}, s{sT1} offen offset:{256*u} sc1")
    a("s_waitcnt vmcnt(0)")
    untag(HG + 16, 16, BT)
    retry(L, sleep=2, masked=True)
    for b in range(2):
        for i in range(4): a(f"v_mov_b32 v{HG+8*b+i}, v{HG+16+4*b+i}")
    for i in range(4): a(f"v_mov_b32 v{HG+16+i}, v{HG+24+i}")
    for i in range(4): a(f"v_mov_b32 v{HG+24+i}, v{HG+28+i}")
    for b in range(2):
        for i in range(4): a(f"v_permlane32_swap_b32 v{HG+8*b+i}, v{HG+8*(b+2)+i}")
    for b in range(2):
        for i in (0, 2): a(f"v_pk_add_f32 {vr(HG+8*b+i,2)}, {vr(HG+8*b+i,2)}, {vr(HG+8*(b+2)+i,2)}")
    for i in range(4): a(f"v_permlane16_swap_b32 v{HG+i}, v{HG+8+i}")
    for i in (0, 2): a(f"v_pk_add_f32 {vr(HG+i,2)}, {vr(HG+i,2)}, {vr(HG+8+i,2)}")
    for i in range(4): a(f"v_add_f32_dpp v{HG+i}, v{HG+i}, v{HG+i} row_ror:8 {DPPM}")
    for i in range(2): a(f"v_cvt_pk_bf16_f32 v{HG+8+i}, v{HG+2*i}, v{HG+2*i+1}")
    for i in range(2):
        a(f"v_lshlrev_b32 v{HG+2*i}, 16, v{HG+8+i}"); a(f"v_and_b32 v{HG+2*i+1}, 0xffff0000, v{HG+8+i}")
    a(f"s_mov_b32 s{sT0}, 0xbfb8aa3b")
    for i in range(4): a(f"v_mul_f32 v{HG+8+i}, s{sT0}, v{HG+i}")
    for i in range(4): a(f"v_exp_f32 v{HG+8+i}, v{HG+8+i}")
    for i in range(4): a(f"v_add_f32 v{HG+8+i}, 1.0, v{HG+8+i}")
    for i in range(4): a(f"v_rcp_f32 v{HG+8+i}, v{HG+8+i}")
    for i in range(4): a(f"v_mul_f32 v{HG+i}, v{HG+i}, v{HG+8+i}")
    for i in range(2): a(f"v_cvt_pk_bf16_f32 v{HG+8+i}, v{HG+2*i}, v{HG+2*i+1}")
    a(f"v_cmp_le_u32 vcc, s{sT3}, v33" if al else "v_cmp_eq_u32 vcc, 7, v33")
    for i in range(2): a(f"v_cndmask_b32 v{HG+8+i}, v{HG+8+i}, 0, vcc")
    a("v_lshlrev_b32 v4, 6, v2"); a("v_lshl_add_u32 v4, v33, 3, v4")
    a(f"ds_write_b64 v4, {vr(HG+8,2)} offset:{L_AH}")
    a("v_and_b32 v5, 3, v0"); a("v_lshlrev_b32 v5, 6, v5"); a("v_lshl_add_u32 v5, v2, 4, v5"); a(f"v_add_u32 v5, {L_AH}, v5"); a(f"v_mov_b32 v4, {L_ZERO}")
    for g in range(4): a(f"v_cndmask_b32 v{HG+g}, v4, v5, s[{sM+2*g}:{sM+2*g+1}]")
    for g in range(4): a(f"ds_read_b128 {vr(AV+4*g,4)}, v{HG+g}")
    a("s_waitcnt lgkmcnt(0)")
    def w2_finish():
        if w2late:
            lds_wait(F_W2, 2 if w2_sig is None else 1, sleep=1)
            w2_loads(W2S, W2S+4, W2S+5, 138, 139)
            if tlate:
                for u in range(2): a(f"buffer_load_dwordx4 {vr(56+4*u,4)}, v1, {WSRD}, s{(sT5, 54)[u]} offen")
            PB, D = 72, 104
            for m in range(4):
                a(f"s_waitcnt vmcnt({(8 if tlate else 6)-2*m})")
                for e in range(8):
                    a(f"v_perm_b32 v{PB+4*e+m}, v{D+4*(2*m+1)+(e>>1)}, v{D+4*(2*m)+(e>>1)}, s{sSELHI if e & 1 else sSELLO}")
            seen = set()
            for e in (0, 4, 1, 5, 2, 6, 3, 7):
                ac, g = emap(e, 'A')
                c = vr(ACC+4*ac, 4) if ac in seen else "0"; seen.add(ac)
                a(f"v_mfma_f32_16x16x32_bf16 {vr(ACC+4*ac,4)}, {vr(AV+4*g,4)}, {vr(PB+4*e,4)}, {c}")
            for i in range(8): a(f"v_min_u32 v{ACC+i}, 0xfffffffe, v{ACC+i}")
        else: block(WD, AV, BT, ACC, 'A', first=True)
        a("v_lshlrev_b32 v4, 4, v0")
        for i in range(2): a(f"ds_write_b128 v4, {vr(ACC+4*i,4)} offset:{L_M+1024*i}")
        if not w2late: lds_signal(F_MLP)
        stamp(2)
    if not w2late: w2_finish()
    a("; ---- wave 2: final reduction"); a.label("L_final")
    I = 1 << fk
    nparts = 64 if combine else 128
    nld = nparts * I // 64
    if fk > 1:
        a(f"s_cmp_lt_u32 s{sJ}, {64 // I}"); a("s_cbranch_scc1 L_fin")
        stamp(5); stamp(6); stamp(7)
        finish_wave()
        a.label("L_fin")
    assert fk == 1
    a(f"s_lshr_b32 s{sT0}, s{sKVH}, 1"); a(f"s_lshr_b32 s{sT1}, s{sJ}, 4")
    a(f"s_bfe_u32 s{sT2}, s{sJ}, 0x20002"); a(f"s_lshl_b32 s{sT2}, s{sT2}, 4"); a(f"s_and_b32 s{sT3}, s{sKVH}, 1"); a(f"s_lshl_b32 s{sT3}, s{sT3}, 3")
    a(f"s_add_u32 s{sT2}, s{sT2}, s{sT3}"); a(f"s_lshl_b32 s{sT3}, s{sCQ}, 1"); a(f"s_add_u32 s{sT2}, s{sT2}, s{sT3}")
    a(f"v_and_b32 v4, 1, v0"); a(f"v_add_u32 v4, s{sT2}, v4")
    if numa:
        a("v_lshrrev_b32 v5, 3, v0"); a("v_lshlrev_b32 v5, 14, v5"); a("v_bfe_u32 v1, v0, 1, 2"); a("v_lshl_add_u32 v5, v1, 11, v5"); a("v_lshl_add_u32 v1, v4, 4, v5")
    else:
        a(f"v_lshrrev_b32 v5, {fk}, v0"); a("v_lshlrev_b32 v5, 11, v5"); a("v_lshl_add_u32 v1, v4, 4, v5")
    a(f"s_lshl_b32 s{sT2}, s{sT0}, {18 if numa else 17}"); a(f"s_lshl_b32 s{sT3}, s{sT1}, 10"); a(f"s_add_u32 s{sT2}, s{sT2}, s{sT3}"); a(f"s_add_u32 s{sT5}, s{sT2}, {FP}")
    sso = [sT5] + list(range(54, 62))
    for u in range(1, nld): a(f"s_add_u32 s{sso[u]}, s{sT5}, {(2 if numa else 1)*2048*(64//I)*u}")
    if numa:
        for u in range(2): a(f"s_add_u32 s{sso[2+u]}, s{sso[u]}, 8192")
    a("v_and_b32 v5, 15, v4"); a("v_lshlrev_b32 v5, 3, v5"); a("v_lshrrev_b32 v4, 4, v4"); a("v_add_u32 v4, v4, v5")
    a(f"s_lshl_b32 s{sT0}, s{sT0}, 7"); a(f"s_lshl_b32 s{sT1}, s{sT1}, 2"); a(f"s_add_u32 s{sT0}, s{sT0}, s{sT1}")
    a(f"v_add_u32 v4, s{sT0}, v4"); a("v_lshlrev_b32 v4, 1, v4"); a("v_lshl_add_u32 v30, v2, 10, v4")
    srd(sSRD, sX, 4096); srd(sSRD2, sOUT, 4096)
    a(f"buffer_load_ushort v31, v30, s[{sSRD}:{sSRD+3}], 0 offen")
    if "out" in touch: a(f"buffer_load_ushort v32, v30, s[{sSRD2}:{sSRD2+3}], 0 offen")
    if "fp" in touch and not tlate and not own_touch:
        if two: a(f"s_cmp_eq_u32 s{sWAVE}, 3"); a("s_cbranch_scc1 L_nofp")
        for u in range(4 if numa else 2): a(f"buffer_load_dwordx4 {vr(56+4*u,4)}, v1, {WSRD}, s{sso[u]} offen")
    if two and "fp" in touch: a.label("L_nofp")
    a(f"v_mov_b32 v29, s{sTAG}")
    a("s_setprio 3")
    assert w2late
    w2_finish()
    a("v_lshlrev_b32 v31, 16, v31")
    lds_wait(F_FP, 2, sleep=1)
    stamp(5)
    FD = 40
    if pipe2:
        assert nld == 2
        GA, GB, sMISS = 56, 64, sM1
        def issue(Rg):
            cp = 2 * (((Rg - 56) // 8) & 1) if numa else 0
            for u in range(nld): a(f"buffer_load_dwordx4 {vr(Rg+4*u,4)}, v1, {WSRD}, s{sso[cp+u]} offen sc1")
        def take(Rg, done):
            a(f"s_waitcnt vmcnt({2*(depth-1)})")
            untag(Rg, 8, 8)
            a(f"s_andn2_b64 exec, exec, vcc")
            for i in range(8): a(f"v_mov_b32 v{FD+i}, v{Rg+i}")
            a(f"s_mov_b64 exec, vcc")
            a(f"s_cbranch_vccz {done}")
            issue(Rg)
        LP, DN = lab("poll"), lab("d")
        sets = [56 + 8*i for i in range(depth)]
        if two:
            a(f"s_cmp_lg_u32 s{sWAVE}, 3"); a("s_cbranch_scc1 L_nst"); a(f"s_sleep {max(stag // 2, 1)}"); a.label("L_nst")
        for i, Rg in enumerate(sets):
            if i and stag: a(f"s_sleep {stag}")
            issue(Rg)
        a.label(LP)
        for Rg in sets: take(Rg, DN)
        a(f"s_sub_u32 s{sCNT}, s{sCNT}, 1"); a(f"s_cbranch_scc0 {LP}"); a("s_endpgm")
        a.label(DN)
        a("s_mov_b64 exec, -1")
    else:
        if first_plain:
            for u in range(nld): a(f"buffer_load_dwordx4 {vr(FD+4*u,4)}, v1, {WSRD}, s{sso[u]} offen")
            a("s_branch L_fchk")
        L = lab("poll"); a.label(L)
        for u in range(nld): a(f"buffer_load_dwordx4 {vr(FD+4*u,4)}, v1, {WSRD}, s{sso[u]} offen sc1" + NT("fld"))
        if first_plain: a.label("L_fchk")
        a("s_waitcnt vmcnt(0)")
        untag(FD, 4*nld, 8)
        retry(L, sleep=fin_sleep, masked=True)
    stamp(6)
    n = nld
    while n > 1:
        n //= 2
        for u in range(n):
            for i in (0, 2): a(f"v_pk_add_f32 {vr(FD+4*u+i,2)}, {vr(FD+4*u+i,2)}, {vr(FD+4*(u+n)+i,2)}")
    a(f"v_permlane32_swap_b32 v{FD}, v{FD+2}"); a(f"v_permlane32_swap_b32 v{FD+1}, v{FD+3}")
    a(f"v_pk_add_f32 {vr(FD,2)}, {vr(FD,2)}, {vr(FD+2,2)}")
    a(f"v_permlane16_swap_b32 v{FD}, v{FD+1}")
    a(f"v_add_f32 v8, v{FD}, v{FD+1}")
    allreduce("v_add_f32", 8, 9, ['q2', 'r4', 'r8'][fk-1:])
    a("v_add_f32 v8, v8, v31")
    a("v_cvt_pk_bf16_f32 v8, v8, v8")
    m = ((1 << I) - 1) * 0x00010001
    a(f"s_mov_b32 exec_lo, {hex(m)}"); a(f"s_mov_b32 exec_hi, {hex(m)}")
    a(f"buffer_store_short v8, v30, s[{sSRD2}:{sSRD2+3}], 0 offen")
    a("s_cmp_lg_u32 s2, 0"); a("s_cbranch_scc1 L_noep")
    a("s_mov_b64 exec, 1")
    a(f"buffer_store_dword v29, v{vZ}, {WSRD}, 0 offen offset:{EP} sc1")
    a.label("L_noep")
    a("s_mov_b64 exec, -1")
    stamp(7)
    finish_wave()

    if stamps:
        a.label("L_stamp_out")
        a("s_mov_b64 exec, -1")
        a("s_waitcnt vmcnt(0) lgkmcnt(0)")
        for k in range(8): a(f"v_mov_b32 v{8+k}, s{sSTAMP+2*k}")
        a(f"s_mul_i32 s{sT0}, s2, 12"); a(f"s_add_u32 s{sT0}, s{sT0}, s{sWAVE}"); a(f"s_lshl_b32 s{sT0}, s{sT0}, 5"); a(f"s_add_u32 s{sT0}, s{sT0}, {STAMP}")
        a("s_mov_b64 exec, 1")
        a(f"buffer_store_dwordx4 v[8:11], v{vZ}, {WSRD}, s{sT0} offen")
        a(f"buffer_store_dwordx4 v[12:15], v{vZ}, {WSRD}, s{sT0} offen offset:16")
    a.label("L_exit")
    a("s_endpgm")
    order = ["pro", "H"] + (["K1"] if lay2 else []) + ["H3c", "H0c", "H1c", "V", "K2", "rest"]
    a.L = [ln for k in order for ln in secs[k]]
    body = a.finish()
    txt = HEADER + f"; @launch grid=(256,1,1) block=(768,1,1) lds={LDS_BYTES}\n"
    txt += '.amdgcn_target "amdgcn-amd-amdhsa--gfx950"\n' + DOC.lstrip("\n") + '.text\n'
    txt += f".globl {NAME}_kernel\n.p2align 8\n.type {NAME}_kernel,@function\n" + body
    txt += f'''.section .rodata,"a"
.p2align 6
.amdhsa_kernel {NAME}_kernel
  .amdhsa_next_free_vgpr 168
  .amdhsa_next_free_sgpr 102
  .amdhsa_accum_offset 168
  .amdhsa_group_segment_fixed_size 0
  .amdhsa_kernarg_size 88
  .amdhsa_user_sgpr_count 2
  .amdhsa_user_sgpr_kernarg_segment_ptr 1
  .amdhsa_system_sgpr_workgroup_id_x 1
  .amdhsa_float_denorm_mode_32 3
.end_amdhsa_kernel
'''
    return txt

U_ = dict(pk=0, pv=0, kgate=True, wo_sig=31, touch=("out", "fp", "v", "wo"), xlast=True, kpre=3)
U_["rot"] = 0
U_["touch"] = ("fp",)
U_["qpl"] = True
U_["al"] = False
U_["stag"] = 0
if __name__ == "__main__":
    open("fin.s", "w").write(gen(**U_))
    open("fins.s", "w").write(gen(stamps=True, **U_))
    open("cdna_kernels/" + NAME + ".s", "w").write(gen(**U_))
```

```python
import sys
from asmlib import *
NAME = "parallel_sum__gqa_block_cached__dense_activation_silu__decode"

EP, QP, HP, ST, OP, FP, STAMP = 0x0, 0x1000, 0xC4000, 0x138000, 0x140000, 0x180000, 0x300000
WS_SIZE = 0x400000
F_P1, F_MIX, F_Q, F_CLR, F_P, F_VISS, F_OCNT, F_FW, F_PUB, F_FP, F_WO, F_STAT, F_KISS = 0, 1, 2, 3, 4, 8, 9, 10, 11, 12, 13, 14, 15
L_ZERO, L_FW, L_Q, L_P, L_OS, L_AO, L_ST, L_X = 0x80, 0x180, 0x200, 0x600, 0x1600, 0x2e00, 0x3000, 0x3100
L_M, L_AH = 0x3900, 0x4100
F_MLP = F_PUB
F_P0 = 16
F_XN = 17
F_W2 = 18
L_XN = 0x600
LDS_BYTES = 0x4200

DOC = r'''
; ---------------------------------------------------------------------------------------------------------------
; One persistent launch, 256 workgroups (one per CU) x 12 waves.  Workgroup i: kv head = i&7, j = i>>3, batch = j>>3,
; key split = j&7 (512 keys).  The 32 workgroups of one kv head form a group and exchange data through d_ws.
;   wave 3     LayerNorm, workgroup softmax statistics
; Hand-offs carry a per-launch tag (mix of the epoch word ws[0], rewritten at the end) or an "empty" marker written in
; repeated write-through (d_debug word = request for that).  Every wait is bounded.
; ---------------------------------------------------------------------------------------------------------------
'''
HEADER = open("cdna_kernels/" + NAME + ".s.ref").read().split("; Override launch")[0]

def gen(stamps=False, gate_v=True, wo_sig=30, pk=9, pv=12, pl=0, kgate=True, fast=True, combine=True, fk=1, first_plain=False, fin_sleep=0, qplain=False, hplain=True, early_bar=False, layout=True, warm=True, tlb=0, abl=(), nt=(), kpre=4, lateclr=True, prog=True, pipe2=True, late_hp=True, diag=False, touch=(), diag2=False, xlast=False, two=False, depth=2, stag=4, numa=False, w1late=0, rot=0, lay2=True, g4k=0, omap='w0 w1 t0 t1 g0 g1 t2 t3 t4', stfirst=False, h1clr=True, qpl=False, opt=True, w2late=True, tlate=False, w2_sig=None, own_touch=True, split=True, wqs=None, noack=False, al=True, heavy=0, free=0):
    pos = {k: i + 8 for i, k in enumerate(omap.split())}
    toff = lambda tt: sum(((tt >> i) & 1) << pos[f't{i}'] for i in range(5))
    NT = lambda k: ' nt' if k in nt else ''
    a = Asm()
    uid = [0]
    def lab(p):
        uid[0] += 1; return f"L_{p}{uid[0]}"
    sX, sK, sV, sWQ, sWO, sW1, sW2, sOUT, sDBG, sWS = 4, 6, 8, 10, 12, 16, 18, 20, 22, 24
    sWAVE, sKVH, sJ, sB, sS, sW = 26, 27, 28, 29, 30, 31
    sSRD, sSRD2, sSRDW = 32, 36, 40
    sT0, sT1, sT2, sT3, sT4, sT5 = 44, 45, 46, 47, 48, 49
    sCNT, sSELLO, sSELHI, sTAG = 50, 51, 52, 53
    sM = 54
    sO = 62
    sHF, sCQ, sDB, sXCC = 70, 71, 72, 73
    sM1, sM2, sHI, sMIX = 74, 76, 78, 79
    sSTAMP = 80
    sTB = 96
    vZ, vONE = 6, 7
    WSRD = f"s[{sSRDW}:{sSRDW+3}]"
    def dstamp(k):
        if stamps and diag2: a(f"s_memrealtime s[{sSTAMP+2*k}:{sSTAMP+2*k+1}]")
    def stamp(k):
        if diag2 and k in (3, 4, 6): return
        if stamps: a(f"s_memrealtime s[{sSTAMP+2*k}:{sSTAMP+2*k+1}]")
    def finish_wave():
        a("s_branch L_stamp_out" if stamps else "s_endpgm")
    def srd(dst, ptr, size):
        a(f"s_mov_b32 s{dst}, s{ptr}"); a(f"s_mov_b32 s{dst+1}, s{ptr+1}")
        a(f"s_mov_b32 s{dst+2}, {hex(size)}"); a(f"s_mov_b32 s{dst+3}, 0x20000")
    def slab_srd(ptr):
        a(f"s_add_u32 s{sSRD}, s{ptr}, s{sT5}"); a(f"s_addc_u32 s{sSRD+1}, s{ptr+1}, 0")
        a(f"s_mov_b32 s{sSRD+2}, 0x20000"); a(f"s_mov_b32 s{sSRD+3}, 0x20000")
    def step(tt):
        h0, h1 = toff(tt) & ~4095, toff(tt + 1) & ~4095
        if h0 == h1: a("s_nop 0")
        elif h1 < 0x8000: a(f"s_movk_i32 s{sO}, {h1}")
        else: a(f"s_mov_b32 s{sO}, {h1}")
    def goff(dst, bit0, base):
        if pos['g1'] == pos['g0'] + 1:
            a(f"v_bfe_u32 v5, v0, {bit0}, 2"); a(f"v_lshl_add_u32 v{dst}, v5, {pos['g0']}, v{base}")
        else:
            a(f"v_bfe_u32 v5, v0, {bit0}, 1"); a(f"v_lshl_add_u32 v{dst}, v5, {pos['g0']}, v{base}")
            a(f"v_bfe_u32 v5, v0, {bit0+1}, 1"); a(f"v_lshl_add_u32 v{dst}, v5, {pos['g1']}, v{dst}")
    def lds_wait(flag, value, sleep=1, vt=5, addr=None):
        L, D = lab("w"), lab("d")
        a.label(L)
        a(f"ds_read_b32 v{vt}, v{vZ if addr is None else addr} offset:{flag*4}")
        a("s_waitcnt lgkmcnt(0)")
        a(f"v_readfirstlane_b32 s{sT0}, v{vt}")
        a(f"s_cmp_ge_u32 s{sT0}, {value}")
        a(f"s_cbranch_scc1 {D}")
        if sleep: a(f"s_sleep {sleep}")
        a(f"s_sub_u32 s{sCNT}, s{sCNT}, 1")
        a(f"s_cbranch_scc0 {L}")
        a("s_endpgm")
        a.label(D)
    def lds_signal(flag, addr=None):
        a("s_mov_b64 exec, 1")
        a(f"ds_add_u32 v{vZ if addr is None else addr}, v{vONE} offset:{flag*4}")
        a("s_mov_b64 exec, -1")
    def retry(L, sleep=0, masked=False):
        D = lab("d")
        if masked: a("s_mov_b64 exec, vcc")
        a(f"s_cbranch_vccz {D}")
        if sleep: a(f"s_sleep {sleep}")
        a(f"s_sub_u32 s{sCNT}, s{sCNT}, 1")
        a(f"s_cbranch_scc0 {L}")
        a("s_endpgm")
        a.label(D)
        if masked: a("s_mov_b64 exec, -1")
    def read_mix(vt):
        a(f"ds_read_b32 v{vt}, v{vZ} offset:{F_MIX*4}"); a("s_waitcnt lgkmcnt(0)"); a(f"v_readfirstlane_b32 s{sMIX}, v{vt}")
    def group_store(text):
        if not fast:
            a(text + " sc1"); return
        S, D = lab("s"), lab("d")
        a(f"s_cmp_lg_u32 s{sMIX}, 0"); a(f"s_cbranch_scc1 {S}")
        a(text); a(f"s_branch {D}")
        a.label(S); a(text + " sc1"); a.label(D)
    DPPM = "row_mask:0xf bank_mask:0xf"
    def allreduce(op, x, t, steps):
        for s in steps:
            if s == 'q1': a(f"{op}_dpp v{x}, v{x}, v{x} quad_perm:[1,0,3,2] {DPPM}")
            elif s == 'q2': a(f"{op}_dpp v{x}, v{x}, v{x} quad_perm:[2,3,0,1] {DPPM}")
            elif s in ('r1', 'r2', 'r4', 'r8'): a(f"{op}_dpp v{x}, v{x}, v{x} row_ror:{s[1:]} {DPPM}")
            else:
                a(f"v_mov_b32 v{t}, v{x}")
                a(f"v_permlane{s[1:]}_swap_b32 v{x}, v{t}")
                a(f"{op} v{x}, v{x}, v{t}")
    def rnd(x):
        a(f"v_cvt_pk_bf16_f32 v{x}, v{x}, v{x}"); a(f"v_and_b32 v{x}, 0xffff0000, v{x}")
    def perms(e, D, dst):
        x = e >> 1
        sel = sSELHI if e & 1 else sSELLO
        for m in range(4):
            a(f"v_perm_b32 v{dst+m}, v{D+4*(2*m+1)+x}, v{D+4*(2*m)+x}, s{sel}")
    def emap(e, mode):
        return (e >> 2, e & 3) if mode == 'A' else (e & 1, e >> 1)
    def block(D, A, BT, ACC, mode, first=False):
        perms(0, D, BT)
        seen = set()
        for e in range(8):
            if e < 7: perms(e + 1, D, BT + 4 * ((e + 1) & 1))
            ac, g = emap(e, mode)
            c = "0" if (first and ac not in seen) else vr(ACC + 4*ac, 4)
            seen.add(ac)
            a(f"v_mfma_f32_16x16x32_bf16 {vr(ACC+4*ac,4)}, {vr(A+4*g,4)}, {vr(BT+4*(e&1),4)}, {c}")
    def block8(D, A, BT, ACC, first=False):
        perms(0, D, BT)
        for e in range(8):
            if e < 7: perms(e + 1, D, BT + 4 * ((e + 1) & 1))
            c = "0" if (first and not e & 1) else vr(ACC + 4*(e >> 1), 4)
            a(f"v_mfma_f32_16x16x32_bf16 {vr(ACC+4*(e>>1),4)}, {vr(A+4*(e&1),4)}, {vr(BT+4*(e&1),4)}, {c}")
    def mask2(src, A):
        for v in range(2):
            for m in range(4):
                a(f"v_cndmask_b32 v{A+4*v+m}, 0, v{src+m}, s[{sM1+2*v}:{sM1+2*v+1}]")
    def dense8(ACC):
        for aa in range(4):
            for p in (0, 2): a(f"v_mov_b32_dpp v{ACC+4*aa+p}, v{ACC+4*aa+p+1} row_ror:8 row_mask:0x5 bank_mask:0xc")
        for aa in range(4):
            for p in (0, 2): a(f"v_mov_b32_dpp v{ACC+4*aa+p}, v{ACC+4*aa+p} row_ror:8 row_mask:0xa bank_mask:0x3")
        for aa in range(4):
            for p in (0, 2): a(f"v_mov_b32_dpp v{ACC+4*aa+p}, v{ACC+4*aa+p+1} quad_perm:[0,1,2,3] row_mask:0xa bank_mask:0xc")
        for aa in range(4): a(f"v_permlane16_swap_b32 v{ACC+4*aa}, v{ACC+4*aa+2}")
        for aa in range(4): a(f"v_add_f32 v{ACC+4*aa}, v{ACC+4*aa}, v{ACC+4*aa+2}")
    def dense_to_lds(ACC, base):
        a("v_lshlrev_b32 v4, 5, v0"); a("v_and_b32 v4, 0x3ff, v4"); a("v_lshrrev_b32 v5, 5, v0"); a("v_lshl_add_u32 v4, v5, 2, v4")
        for aa in range(4): a(f"ds_write_b32 v4, v{ACC+4*aa} offset:{base+8*aa}")
    def transpose4(R):
        a(f"v_permlane32_swap_b32 v{R}, v{R+2}"); a(f"v_permlane32_swap_b32 v{R+1}, v{R+3}")
        a(f"v_permlane16_swap_b32 v{R}, v{R+1}"); a(f"v_permlane16_swap_b32 v{R+2}, v{R+3}")
    def mask_variants(src, A):
        for g in range(4):
            for m in range(4):
                a(f"v_cndmask_b32 v{A+4*g+m}, 0, v{src+m}, s[{sM+2*g}:{sM+2*g+1}]")
    def set_masks():
        for g in range(4):
            v = 0x000F000F << (4 * g)
            a(f"s_mov_b32 s{sM+2*g}, {hex(v)}"); a(f"s_mov_b32 s{sM+2*g+1}, {hex(v)}")
    def set_sel():
        a(f"s_mov_b32 s{sSELLO}, 0x05040100"); a(f"s_mov_b32 s{sSELHI}, 0x07060302")
    def epoch_load():
        a(f"s_load_dword s{sTAG}, s[{sWS}:{sWS+1}], {EP}")
    def make_tag():
        a("s_waitcnt lgkmcnt(0)")
        a(f"s_mul_i32 s{sTAG}, s{sTAG}, 0x9e3779b1"); a(f"s_add_u32 s{sTAG}, s{sTAG}, 0x7f4a7c15")
        for k in range(4): a(f"s_bfe_u32 s{sTB+k}, s{sTAG}, {hex(0x80000 | (8*k))}")
        a(f"s_mov_b32 s{sHI}, 0xffffff00")
    def bytetag(R, n):
        for i in range(n): a(f"v_and_b32 v{R+i}, s{sHI}, v{R+i}")
        for i in range(n): a(f"v_or_b32 v{R+i}, s{sTB+(i&3)}, v{R+i}")
    def untag(R, n, T):
        for i in range(n): a(f"v_xor_b32 v{R+i}, s{sTB+(i&3)}, v{R+i}")
        nt = n // 8
        for t in range(nt): a(f"v_or3_b32 v{T+t}, v{R+8*t}, v{R+8*t+1}, v{R+8*t+2}")
        for t in range(nt): a(f"v_or3_b32 v{T+t}, v{T+t}, v{R+8*t+3}, v{R+8*t+4}")
        for t in range(nt): a(f"v_or3_b32 v{T+t}, v{T+t}, v{R+8*t+5}, v{R+8*t+6}")
        for t in range(nt): a(f"v_or_b32 v{T+t}, v{T+t}, v{R+8*t+7}")
        for t in range(1, nt): a(f"v_or_b32 v{T}, v{T}, v{T+t}")
        a(f"v_and_b32 v{T}, 0xff, v{T}")
        a(f"v_cmp_ne_u32 vcc, 0, v{T}")
    def reduce8to2(R):
        for i in range(4): a(f"v_permlane32_swap_b32 v{R+i}, v{R+4+i}")
        for i in (0, 2): a(f"v_pk_add_f32 {vr(R+i,2)}, {vr(R+i,2)}, {vr(R+4+i,2)}")
        for i in range(2): a(f"v_permlane16_swap_b32 v{R+i}, v{R+2+i}")
        a(f"v_pk_add_f32 {vr(R,2)}, {vr(R,2)}, {vr(R+2,2)}")

    secs = {}
    def section(name):
        secs.setdefault(name, []); a.L = secs[name]
    def bar():
        if not early_bar: a("s_barrier")
    section("pro")
    a(f"{NAME}_kernel:")
    stamp(0)
    a("s_cmp_ge_u32 s2, 256"); a("s_cbranch_scc1 L_exit")
    a("s_load_dwordx16 s[4:19], s[0:1], 0")
    def karg2():
        a("s_load_dwordx4 s[20:23], s[0:1], 64")
        a("s_load_dwordx2 s[24:25], s[0:1], 80")
    if not split: karg2()
    a("v_lshrrev_b32 v1, 6, v0")
    a("v_and_b32 v0, 63, v0")
    a(f"v_mov_b32 v{vZ}, 0")
    a(f"v_readfirstlane_b32 s{sWAVE}, v1")
    a(f"v_mov_b32 v{vONE}, 0")
    a("v_lshlrev_b32 v2, 3, v0")
    a(f"ds_write_b64 v2, v[{vZ}:{vONE}]")
    a(f"v_mov_b32 v{vONE}, 1")
    a(f"s_and_b32 s{sKVH}, s2, 7"); a(f"s_lshr_b32 s{sJ}, s2, 3")
    a(f"s_lshr_b32 s{sB}, s{sJ}, 3"); a(f"s_and_b32 s{sS}, s{sJ}, 7")
    a(f"s_mov_b32 s{sCNT}, 0x40000")
    a("v_lshrrev_b32 v2, 4, v0"); a("v_and_b32 v3, 15, v0")
    if not early_bar: a(f"s_cmp_lt_u32 s{sWAVE}, 4"); a("s_cbranch_scc1 L_H")
    a(f"s_lshl_b32 s{sT0}, s{sB}, 3"); a(f"s_add_u32 s{sT0}, s{sT0}, s{sKVH}"); a(f"s_lshl_b32 s{sT0}, s{sT0}, 20")
    a(f"s_lshl_b32 s{sT1}, s{sS}, 17"); a(f"s_add_u32 s{sT0}, s{sT0}, s{sT1}")
    a(f"s_and_b32 s{sW}, s{sWAVE}, 3")
    if pos['w1'] == pos['w0'] + 1: a(f"s_lshl_b32 s{sT1}, s{sW}, {pos['w0']}")
    else:
        a(f"s_and_b32 s{sT1}, s{sW}, 1"); a(f"s_lshl_b32 s{sT1}, s{sT1}, {pos['w0']}"); a(f"s_add_u32 s{sT0}, s{sT0}, s{sT1}"); a(f"s_lshr_b32 s{sT1}, s{sW}, 1"); a(f"s_lshl_b32 s{sT1}, s{sT1}, {pos['w1']}")
    a(f"s_add_u32 s{sT5}, s{sT0}, s{sT1}")
    if rot: a(f"s_mul_i32 s{sO}, s{sJ}, {4096*rot}"); a(f"s_mov_b32 s{sO+1}, 0x1f000"); a(f"s_and_b32 s{sO}, s{sO}, s{sO+1}")
    else: a(f"s_mov_b32 s{sO}, 0")
    if not early_bar: a(f"s_cmp_ge_u32 s{sWAVE}, 8"); a("s_cbranch_scc1 L_V")

    KD = 40
    a("v_lshlrev_b32 v4, 6, v2"); a("v_and_b32 v5, 3, v0"); a("v_lshl_add_u32 v4, v5, 4, v4")
    a("v_bfe_u32 v5, v0, 2, 2"); a("v_lshl_add_u32 v36, v5, 8, v4")
    goff(1, 2, 4)
    if tlb == 3:
        a(f"s_lshl_b32 s64, s2, 12"); a(f"s_lshl_b32 s65, s{sB}, 20"); a("s_add_u32 s65, s65, s64"); a("s_and_b32 s66, s2, 63"); a("s_lshl_b32 s66, s66, 6")
    a("s_waitcnt lgkmcnt(0)")
    if tlb == 3:
        a(f"s_cmp_lg_u32 s{sW}, 0"); a("s_cbranch_scc1 L_ntlb")
        a(f"s_load_dword s70, s[{sWQ}:{sWQ+1}], s65"); a(f"s_load_dword s71, s[{sW1}:{sW1+1}], s64"); a(f"s_load_dword s72, s[{sX}:{sX+1}], s66")
        a.label("L_ntlb")
    if early_bar:
        a("s_barrier")
        a(f"s_cmp_lt_u32 s{sWAVE}, 4"); a("s_cbranch_scc1 L_H")
        a(f"s_cmp_ge_u32 s{sWAVE}, 8"); a("s_cbranch_scc1 L_V")
    slab_srd(sK)
    stamp(1)
    for tt in range(32):
        if tt == kpre and not early_bar:
            if lay2: a("s_branch L_K1"); section("K1"); a("; ---- K waves: remaining loads (one scalar instruction between loads lets the other waves' memory instructions in)"); a.label("L_K1")
            a("s_barrier")
            if stamps and diag: a(f"s_waitcnt vmcnt({kpre-1})"); stamp(3)
        B, t8 = tt >> 3, tt & 7
        t = 4 * (2*B + (t8 & 1)) + (t8 >> 1)
        a(f"buffer_load_dwordx4 {vr(KD+4*t,4)}, v1, s[{sSRD}:{sSRD+3}], s{sO} offen offset:{toff(tt) & 4095} nt")
        if tt < 31: step(tt)
        if pk and pk <= tt < 31: a(f"s_waitcnt vmcnt({pk})")
    if kgate: lds_signal(F_KISS)
    stamp(2)
    if layout: a("s_branch L_K2"); section("K2"); a("; ---- K waves: scores and local softmax"); a.label("L_K2")
    if stamps:
        if split: karg2(); a("s_waitcnt lgkmcnt(0)")
        srd(sSRDW, sWS, WS_SIZE)
    a(f"s_mov_b32 s{sM1}, 0xaaaaaaaa"); a(f"s_mov_b32 s{sM1+1}, 0xaaaaaaaa")
    a(f"s_mov_b32 s{sM2}, 0xcccccccc"); a(f"s_mov_b32 s{sM2+1}, 0xcccccccc")
    a("v_lshlrev_b32 v37, 8, v2"); a("v_lshl_add_u32 v37, v3, 2, v37")
    a(f"s_lshl_b32 s{sT1}, s{sW}, 10"); a(f"v_add_u32 v37, s{sT1}, v37")
    a("v_lshlrev_b32 v38, 3, v2"); a(f"s_lshl_b32 s{sT1}, s{sW}, 5"); a(f"v_add_u32 v38, s{sT1}, v38")
    a(f"s_lshl_b32 s{sT1}, s{sW}, 2"); a(f"v_mov_b32 v39, s{sT1}")
    lds_wait(F_Q, 4, sleep=2)
    a(f"ds_read_b128 v[8:11], v36 offset:{L_Q}")
    a("s_waitcnt vmcnt(0) lgkmcnt(0)")
    stamp(4)
    QR, T0, Y = 8, 12, 28
    def Dreg(u): return T0 if u == 0 else KD + 16 * (u - 1)
    def mf(u):
        for jj in range(4):
            a(f"v_mfma_f32_16x16x32_bf16 {vr(Dreg(u)+4*jj,4)}, {vr(QR,4)}, {vr(KD+16*u+4*jj,4)}, 0")
    ZR = [32, 33, 34, 35, 12, 13, 14, 15]
    mf(0)
    for u in range(8):
        if u < 7: mf(u + 1)
        D = Dreg(u)
        for s in range(4):
            for jj in range(4):
                q = f"quad_perm:[{s},{s},{s},{s}] {DPPM}"
                if s == 0: a(f"v_mov_b32_dpp v{Y+jj}, v{D+4*jj} {q}")
                else: a(f"v_add_f32_dpp v{Y+jj}, v{D+4*jj+s}, v{Y+jj} {q}")
        a(f"v_cndmask_b32 v{Y}, v{Y}, v{Y+1}, s[{sM1}:{sM1+1}]")
        a(f"v_cndmask_b32 v{Y+2}, v{Y+2}, v{Y+3}, s[{sM1}:{sM1+1}]")
        a(f"v_cndmask_b32 v{ZR[u]}, v{Y}, v{Y+2}, s[{sM2}:{sM2+1}]")
    a(f"s_mov_b32 s{sT1}, 0x3db504f3")
    for B in range(4): a(f"v_cvt_pk_bf16_f32 v{Y+B}, v{ZR[2*B]}, v{ZR[2*B+1]}")
    for B in range(4):
        z0, z1 = ZR[2*B], ZR[2*B+1]
        a(f"v_lshlrev_b32 v{z0}, 16, v{Y+B}"); a(f"v_and_b32 v{z1}, 0xffff0000, v{Y+B}")
        a(f"v_mul_f32 v{z0}, s{sT1}, v{z0}"); a(f"v_mul_f32 v{z1}, s{sT1}, v{z1}")
        a(f"v_cvt_pk_bf16_f32 v{Y+B}, v{z0}, v{z1}")
    for B in range(4):
        a(f"v_lshlrev_b32 v{ZR[2*B]}, 16, v{Y+B}"); a(f"v_and_b32 v{ZR[2*B+1]}, 0xffff0000, v{Y+B}")
    MX, SM = 16, 17
    a(f"v_max3_f32 v{MX}, v{ZR[0]}, v{ZR[1]}, v{ZR[2]}"); a(f"v_max3_f32 v{MX}, v{MX}, v{ZR[3]}, v{ZR[4]}")
    a(f"v_max3_f32 v{MX}, v{MX}, v{ZR[5]}, v{ZR[6]}"); a(f"v_max_f32 v{MX}, v{MX}, v{ZR[7]}")
    allreduce("v_max_f32", MX, 18, ['r8', 'r4', 'r2', 'r1'])
    a(f"s_mov_b32 s{sT1}, 0x3fb8aa3b")
    for z in ZR: a(f"v_sub_f32 v{z}, v{z}, v{MX}")
    for z in ZR: a(f"v_mul_f32 v{z}, s{sT1}, v{z}")
    for z in ZR: a(f"v_exp_f32 v{z}, v{z}")
    for B in range(4): a(f"v_cvt_pk_bf16_f32 v{Y+B}, v{ZR[2*B]}, v{ZR[2*B+1]}")
    for B in range(4): a(f"ds_write_b32 v37, v{Y+B} offset:{L_P + 64*B}")
    lds_signal(F_P, addr=39)
    a(f"v_add_f32 v{SM}, v{ZR[0]}, v{ZR[1]}")
    for z in ZR[2:]: a(f"v_add_f32 v{SM}, v{SM}, v{z}")
    allreduce("v_add_f32", SM, 18, ['r8', 'r4', 'r2', 'r1'])
    a(f"ds_write_b64 v38, v[{MX}:{SM}] offset:{L_ST}")
    lds_signal(F_STAT)
    stamp(5)
    finish_wave()

    if layout: section("V")
    a("; ---- V waves"); a.label("L_V")
    if split: karg2()
    VD, AV, BT, ACC = 40, 8, 24, 32
    a("v_lshlrev_b32 v4, 4, v3"); goff(1, 4, 4)
    if not early_bar:
        a("s_waitcnt lgkmcnt(0)")
        if tlb in (1, 2):
            a(f"s_load_dword s64, s[{sK}:{sK+1}], s{sO}"); a(f"s_load_dword s65, s[{sV}:{sV+1}], s{sO}")
            if tlb >= 2:
                a(f"s_lshl_b32 s{sT1}, s{sKVH}, 19")
                a(f"s_load_dword s66, s[{sWO}:{sWO+1}], s{sT1}"); a(f"s_load_dword s67, s[{sW2}:{sW2+1}], 0")
                a(f"s_load_dword s68, s[{sOUT}:{sOUT+1}], 0"); a(f"s_load_dword s69, s[{sW1}:{sW1+1}], 0")
                a(f"s_lshl_b32 s{sT1}, s{sJ}, 17"); a(f"s_load_dword s63, s[{sWQ}:{sWQ+1}], s{sT1}")
        a("s_barrier")
    slab_srd(sV)
    if "v" in touch:
        a(f"s_cmp_lg_u32 s{sW}, 3"); a("s_cbranch_scc1 L_nvt")
        lds_wait(F_P1, 1, sleep=2)
        a("s_mov_b64 exec, 1"); a(f"buffer_load_dword v8, v{vZ}, s[{sSRD}:{sSRD+3}], s{sO} offen nt"); a("s_mov_b64 exec, -1")
        a.label("L_nvt")
    def vloads(pace, last):
        for tt in range(32):
            a(f"buffer_load_dwordx4 {vr(VD+4*tt,4)}, v1, s[{sSRD}:{sSRD+3}], s{sO} offen offset:{toff(tt) & 4095} nt")
            if tt < 31: step(tt)
            if pace and pace <= tt < 31: a(f"s_waitcnt vmcnt({pace})")
            if last and w2_sig is not None and tt == w2_sig: lds_signal(F_W2)
            if wo_sig is not None and tt == wo_sig:
                if last: lds_signal(F_WO)
                elif not gate_v:
                    a(f"s_cmp_lg_u32 s{sW}, 3"); a("s_cbranch_scc1 L_nowo"); lds_signal(F_WO); a.label("L_nowo")
    if gate_v:
        a(f"s_cmp_lg_u32 s{sW}, 3"); a("s_cbranch_scc1 L_Vgo")
        lds_wait(F_VISS, 3, sleep=1)
        stamp(1)
        vloads(pl, True)
        a("s_branch L_Vissued")
        a.label("L_Vgo")
    if kgate: lds_wait(F_KISS, 4, sleep=1)
    stamp(1)
    vloads(pv, False)
    a.label("L_Vissued")
    lds_signal(F_VISS)
    stamp(2)
    set_sel(); set_masks()
    srd(sSRDW, sWS, WS_SIZE)
    a("v_and_b32 v3, 3, v0"); a("v_lshlrev_b32 v3, 8, v3"); a("v_lshl_add_u32 v3, v2, 4, v3")
    a(f"s_lshl_b32 s{sT1}, s{sW}, 10"); a(f"s_add_u32 s{sT1}, s{sT1}, {L_P}"); a(f"v_add_u32 v1, s{sT1}, v3")
    a(f"v_mov_b32 v{BT}, {L_ZERO}")
    for g in range(4): a(f"v_cndmask_b32 v{2+g}, v{BT}, v1, s[{sM+2*g}:{sM+2*g+1}]")
    a(f"s_lshl_b32 s{sT1}, s{sW}, 2"); a(f"v_mov_b32 v{BT}, s{sT1}")
    lds_wait(F_P, 1, sleep=2, vt=BT+1, addr=BT)
    stamp(3)
    def vblock(B):
        for g in range(4): a(f"ds_read_b128 {vr(AV+4*g,4)}, v{2+g} offset:{64*B}")
        a(f"s_waitcnt vmcnt({24-8*B}) lgkmcnt(0)")
        block(VD + 32*B, AV, BT, ACC, 'B', first=(B == 0))
    for B in range(3): vblock(B)
    a(f"s_cmp_eq_u32 s{sW}, 3"); a("s_cbranch_scc1 L_Vlast")
    vblock(3)
    a(f"s_lshl_b32 s{sT1}, s{sW}, 11"); a("v_lshlrev_b32 v1, 4, v0"); a(f"v_add_u32 v1, s{sT1}, v1")
    a(f"ds_write_b128 v1, {vr(ACC,4)} offset:{L_OS}"); a(f"ds_write_b128 v1, {vr(ACC+4,4)} offset:{L_OS+1024}")
    lds_signal(F_OCNT)
    stamp(5)
    finish_wave()
    a("; ---- wave 11: merge and publish"); a.label("L_Vlast")
    a("s_setprio 3")
    OSR, FWR, TOT = VD, VD + 24, VD + 40
    a("v_lshlrev_b32 v95, 4, v0")
    a(f"s_lshl_b32 s{sT1}, s{sKVH}, 5"); a(f"s_add_u32 s{sT1}, s{sT1}, s{sJ}"); a(f"s_lshl_b32 s{sT1}, s{sT1}, 10")
    a(f"s_add_u32 s{sT5}, s{sT1}, {OP}")
    if fast: read_mix(94)
    lds_wait(F_OCNT, 3, sleep=1, vt=94)
    lds_wait(F_FW, 1, sleep=1, vt=94)
    for w in range(3):
        for ac in range(2): a(f"ds_read_b128 {vr(OSR+8*w+4*ac,4)}, v95 offset:{L_OS+2048*w+1024*ac}")
    for w in range(4): a(f"ds_read_b128 {vr(FWR+4*w,4)}, v{vZ} offset:{L_FW+16*w}")
    a("s_waitcnt lgkmcnt(0)")
    for ac in range(2):
        for h in range(4): a(f"v_mul_f32 v{TOT+4*ac+h}, v{FWR+h}, v{OSR+4*ac+h}")
    for w in range(1, 3):
        for ac in range(2):
            for h in range(4): a(f"v_fmac_f32 v{TOT+4*ac+h}, v{FWR+4*w+h}, v{OSR+8*w+4*ac+h}")
    for g in range(4): a(f"ds_read_b128 {vr(AV+4*g,4)}, v{2+g} offset:{64*3}")
    if prog:
        PB, D3 = VD + 56, VD + 96
        for m in range(4):
            a(f"s_waitcnt vmcnt({6-2*m})" + (" lgkmcnt(0)" if m == 3 else ""))
            if m == 3: stamp(4)
            for e in range(8):
                a(f"v_perm_b32 v{PB+4*e+m}, v{D3+4*(2*m+1)+(e>>1)}, v{D3+4*(2*m)+(e>>1)}, s{sSELHI if e & 1 else sSELLO}")
                if m == 3 and e >= 2:
                    ac, g = emap(e - 2, 'B')
                    a(f"v_mfma_f32_16x16x32_bf16 {vr(ACC+4*ac,4)}, {vr(AV+4*g,4)}, {vr(PB+4*(e-2),4)}, {vr(ACC+4*ac,4)}")
        for e in (6, 7):
            ac, g = emap(e, 'B')
            a(f"v_mfma_f32_16x16x32_bf16 {vr(ACC+4*ac,4)}, {vr(AV+4*g,4)}, {vr(PB+4*e,4)}, {vr(ACC+4*ac,4)}")
    else:
        a(f"s_waitcnt vmcnt(0) lgkmcnt(0)")
        stamp(4)
        block(VD + 96, AV, BT, ACC, 'B')
    for ac in range(2):
        for h in range(4): a(f"v_fmac_f32 v{TOT+4*ac+h}, v{FWR+12+h}, v{ACC+4*ac+h}")
    for h in range(4): a(f"v_cvt_pk_bf16_f32 v{BT+h}, v{TOT+h}, v{TOT+4+h}")
    transpose4(BT)
    for h in range(4): a(f"v_min_u32 v{BT+h}, 0xfffffffe, v{BT+h}")
    group_store(f"buffer_store_dwordx4 {vr(BT,4)}, v95, {WSRD}, s{sT5} offen")
    stamp(5)
    finish_wave()

    if layout: section("H")
    a("; ---- helper waves, first loads"); a.label("L_H")
    if split: karg2()
    dstamp(3)
    a("s_setprio 2")
    AV, BT, ACC, WD, XS, U, XA = 8, 24, 32, 40, 104, 120, 136
    def xn_addr(s_k0bytes):
        a("v_and_b32 v4, 3, v0"); a("v_lshlrev_b32 v4, 10, v4"); a("v_lshl_add_u32 v4, v2, 5, v4")
        a("v_bfe_u32 v5, v0, 2, 1"); a("v_lshl_add_u32 v4, v5, 4, v4"); a(f"s_add_u32 s{sT0}, s{s_k0bytes}, {L_XN}"); a(f"v_add_u32 v4, s{sT0}, v4")
        a(f"v_mov_b32 v5, {L_ZERO}"); a("s_mov_b32 vcc_lo, 0x00ff00ff"); a("s_mov_b32 vcc_hi, 0x00ff00ff")
        a("v_cndmask_b32 v160, v5, v4, vcc"); a("v_cndmask_b32 v161, v4, v5, vcc")
    def hconst():
        a("v_mov_b32 v166, 0")
        set_sel(); set_masks()
        a(f"s_lshr_b32 s{sT0}, s{sJ}, 2"); a(f"s_lshl_b32 s{sHF}, s{sKVH}, 3"); a(f"s_add_u32 s{sHF}, s{sHF}, s{sT0}")
        a(f"s_and_b32 s{sCQ}, s{sJ}, 3")
        a(f"s_getreg_b32 s{sXCC}, hwreg(HW_REG_XCC_ID, 0, 4)")
    if not lay2: hconst()
    a(f"s_cmp_ge_u32 s{sWAVE}, 2"); a("s_cbranch_scc1 L_H23")
    a("v_lshrrev_b32 v4, 3, v0"); a("v_and_b32 v5, 7, v0")
    a(f"s_cmp_eq_u32 s{sWAVE}, 1"); a("s_cbranch_scc1 L_H1a")
    def ln_loads(nblk, s_k0bytes):
        srd(sSRD2, sX, 4096)
        for i in range(4): a(f"buffer_load_dwordx4 {vr(XS+4*i,4)}, v160, s[{sSRD2}:{sSRD2+3}], 0 offen offset:{256*i}" + NT("x"))
        for B in range(nblk): a(f"buffer_load_dwordx4 {vr(XA+4*B,4)}, v161, s[{sSRD2}:{sSRD2+3}], s{s_k0bytes} offen offset:{128*B}")
    MEAN, RS = 162, 164
    def ln_stats():
        for i in range(16):
            a(f"v_lshlrev_b32 v{U+2*i}, 16, v{WD+i}"); a(f"v_and_b32 v{U+2*i+1}, 0xffff0000, v{WD+i}")
        for i in range(8): a(f"v_pk_add_f32 {vr(XS+2*i,2)}, {vr(U+4*i,2)}, {vr(U+4*i+2,2)}")
        for i in range(4): a(f"v_pk_add_f32 {vr(XS+2*i,2)}, {vr(XS+2*i,2)}, {vr(XS+8+2*i,2)}")
        for i in range(2): a(f"v_pk_add_f32 {vr(XS+2*i,2)}, {vr(XS+2*i,2)}, {vr(XS+4+2*i,2)}")
        a(f"v_pk_add_f32 {vr(XS,2)}, {vr(XS,2)}, {vr(XS+2,2)}")
        a(f"v_add_f32 v{MEAN}, v{XS}, v{XS+1}")
        allreduce("v_add_f32", MEAN, XS, ['r8', 'r4', 'r2', 'r1'])
        a(f"v_mul_f32 v{MEAN}, 0xbb000000, v{MEAN}")
        a(f"v_mov_b32 v{MEAN+1}, v{MEAN}")
        for i in range(16): a(f"v_pk_add_f32 {vr(U+2*i,2)}, {vr(U+2*i,2)}, {vr(MEAN,2)}")
        for i in range(4): a(f"v_pk_mul_f32 {vr(XS+2*i,2)}, {vr(U+2*i,2)}, {vr(U+2*i,2)}")
        for i in range(4, 16): a(f"v_pk_fma_f32 {vr(XS+2*(i&3),2)}, {vr(U+2*i,2)}, {vr(U+2*i,2)}, {vr(XS+2*(i&3),2)}")
        for i in range(2): a(f"v_pk_add_f32 {vr(XS+2*i,2)}, {vr(XS+2*i,2)}, {vr(XS+4+2*i,2)}")
        a(f"v_pk_add_f32 {vr(XS,2)}, {vr(XS,2)}, {vr(XS+2,2)}")
        a(f"v_add_f32 v{RS}, v{XS}, v{XS+1}")
        allreduce("v_add_f32", RS, XS, ['r8', 'r4', 'r2', 'r1'])
        a(f"v_mul_f32 v{RS}, 0x3b000000, v{RS}")
        rnd(RS)
        a(f"v_add_f32 v{RS}, 0x3727c5ac, v{RS}")
        rnd(RS)
        a(f"v_sqrt_f32 v{RS}, v{RS}")
        rnd(RS)
        a(f"v_rcp_f32 v{RS}, v{RS}")
        rnd(MEAN)
        a(f"v_mov_b32 v{MEAN+1}, v{MEAN}"); a(f"v_mov_b32 v{RS+1}, v{RS}")
    def ln_apply(src):
        for i in range(4):
            a(f"v_lshlrev_b32 v{U+2*i}, 16, v{src+i}"); a(f"v_and_b32 v{U+2*i+1}, 0xffff0000, v{src+i}")
        for i in range(4): a(f"v_pk_add_f32 {vr(U+2*i,2)}, {vr(U+2*i,2)}, {vr(MEAN,2)}")
        for i in range(4): a(f"v_cvt_pk_bf16_f32 v{src+i}, v{U+2*i}, v{U+2*i+1}")
        for i in range(4):
            a(f"v_lshlrev_b32 v{U+2*i}, 16, v{src+i}"); a(f"v_and_b32 v{U+2*i+1}, 0xffff0000, v{src+i}")
        for i in range(4): a(f"v_pk_mul_f32 {vr(U+2*i,2)}, {vr(U+2*i,2)}, {vr(RS,2)}")
        for i in range(4): a(f"v_cvt_pk_bf16_f32 v{src+i}, v{U+2*i}, v{U+2*i+1}")

    A16 = 8 + 16
    a("v_lshlrev_b32 v1, 16, v4"); a("v_lshl_add_u32 v1, v5, 4, v1")
    a(f"s_lshl_b32 s{sT1}, s{sB}, 8")
    a(f"s_lshl_b32 s{sT2}, s{sB}, 20"); a(f"s_lshl_b32 s{sT3}, s{sKVH}, 10"); a(f"s_add_u32 s{sT2}, s{sT2}, s{sT3}")
    a(f"s_lshl_b32 s{sT3}, s{sS}, 7"); a(f"s_add_u32 s{sT2}, s{sT2}, s{sT3}")
    a("s_waitcnt lgkmcnt(0)")
    dstamp(4)
    epoch_load()
    dstamp(6)
    srd(sSRD, sWQ, 0x400000)
    def wq_loads(B):
        for t in range(8):
            a(f"buffer_load_dwordx4 {vr(WD+32*B+4*t,4)}, v1, s[{sSRD}:{sSRD+3}], s{sT2} offen nt")
            if not (B == 1 and t == 7): a(f"s_add_u32 s{sT2}, s{sT2}, {8192 if t < 7 else 8192*57}")
    wq_loads(0)
    if wqs is None: wq_loads(1)
    bar()
    stamp(1)
    a("s_branch L_H0c"); section("H0c"); a("; ---- wave 0: q partials"); a.label("L_H0c")
    hconst()
    srd(sSRDW, sWS, WS_SIZE)
    if wqs is not None:
        a(f"s_waitcnt vmcnt({wqs})"); wq_loads(1)
    xn_addr(sT1)
    make_tag()
    a("v_lshrrev_b32 v4, 5, v0"); a("v_and_b32 v5, 31, v0")
    a("v_lshlrev_b32 v166, 14, v4"); a("v_lshl_add_u32 v166, v5, 4, v166")
    a("v_mul_u32_u24 v165, 12, v5"); a("v_lshl_add_u32 v165, v4, 8, v165")
    a(f"v_cmp_eq_u32 s[{sO}:{sO+1}], 21, v5")
    a(f"s_lshl_b32 s{sT4}, s{sKVH}, 16"); a(f"s_lshr_b32 s{sT3}, s{sS}, 1"); a(f"s_lshl_b32 s{sT3}, s{sT3}, 12"); a(f"s_add_u32 s{sT4}, s{sT4}, s{sT3}")
    a(f"s_lshl_b32 s{sT3}, s{sB}, 10"); a(f"s_add_u32 s{sT4}, s{sT4}, s{sT3}"); a(f"s_and_b32 s{sT3}, s{sS}, 1"); a(f"s_lshl_b32 s{sT3}, s{sT3}, 9")
    a(f"s_add_u32 s{sT4}, s{sT4}, s{sT3}"); a(f"s_add_u32 s{sT4}, s{sT4}, {QP}"); a(f"s_add_u32 s{sT5}, s{sT4}, {2*16384}")
    for i in range(2): a(f"v_mov_b32 v{U+4*i+3}, s{sTAG}")
    a(f"v_mov_b32 v{U+8}, s{sXCC}")
    a(f"v_add_u32 v167, {L_OS}, v165")
    lds_wait(F_XN, 1, sleep=1)
    stamp(5)
    for B in range(2):
        for v in range(2): a(f"ds_read_b128 {vr(XA+8*B+4*v,4)}, v{160+v} offset:{128*B}")
    a("s_waitcnt vmcnt(8) lgkmcnt(0)")
    block8(WD, XA, 16, A16, first=True)
    if not lateclr: lds_wait(F_CLR, 1, sleep=1)
    a("s_waitcnt vmcnt(0)")
    block8(WD + 32, XA + 8, 16, A16)
    dense8(A16)
    dense_to_lds(A16, L_OS)
    for i in range(2):
        a(f"ds_read2_b32 {vr(U+4*i,2)}, v167 offset0:{128*i} offset1:{128*i+1}")
        a(f"ds_read_b32 v{U+4*i+2}, v165 offset:{L_OS+512*i+8}")
    a("s_waitcnt lgkmcnt(0)")
    for i in range(2): a(f"v_cndmask_b32 v{U+4*i+1}, v{U+4*i+1}, v{U+8}, s[{sO}:{sO+1}]")
    def qp_store(fl):
        a("s_mov_b32 exec_lo, 0x00ffffff"); a("s_mov_b32 exec_hi, 0x00ffffff")
        a(f"buffer_store_dwordx4 {vr(U,4)}, v166, {WSRD}, s{sT4} offen" + fl)
        a(f"buffer_store_dwordx4 {vr(U+4,4)}, v166, {WSRD}, s{sT5} offen" + fl)
        a("s_mov_b64 exec, -1")
    qp_store("" if qpl else " sc1")
    stamp(2)
    if w1late == 1: lds_signal(F_P0)
    if not noack: a("s_waitcnt vmcnt(0)")
    lds_signal(F_P1)
    a("s_branch L_qgather")

    if layout: section("H")
    a.label("L_H1a")
    a(f"s_mov_b32 s{sT0}, {8*3584}"); a(f"v_mul_lo_u32 v1, v4, s{sT0}"); a("v_lshl_add_u32 v1, v5, 4, v1")
    def fbase(dst, tmp):
        a(f"s_lshr_b32 s{dst}, s{sKVH}, 1"); a(f"s_mul_i32 s{dst}, s{dst}, 7"); a(f"s_and_b32 s{tmp}, s{sKVH}, 1"); a(f"s_mul_i32 s{tmp}, s{tmp}, {3 if heavy else 4}"); a(f"s_add_u32 s{dst}, s{dst}, s{tmp}")
    def light_scc():
        a(f"s_bitcmp{0 if heavy else 1}_b32 s{sKVH}, 0")
    def fbase7(dst):
        a(f"s_sub_u32 s{dst}, s{sKVH}, {free+1}"); a(f"s_and_b32 s{dst}, s{dst}, 7"); a(f"s_lshl_b32 s{dst}, s{dst}, 2")
    if al == 2:
        a(f"s_cmp_eq_u32 s{sKVH}, {free}"); a("s_cselect_b64 vcc, -1, 0")
        a("v_mov_b32 v4, 0x40000000"); a("v_cndmask_b32 v1, v1, v4, vcc")
        fbase7(sT0); a(f"s_add_u32 s{sT0}, s{sT0}, s{sB}"); a(f"s_lshl_b32 s{sT3}, s{sT0}, 7")
    elif al:
        light_scc(); a(f"s_cselect_b32 s{sT0}, 3, 4"); a(f"s_cmp_ge_u32 s{sB}, s{sT0}"); a("s_cselect_b64 vcc, -1, 0")
        a("v_mov_b32 v4, 0x40000000"); a("v_cndmask_b32 v1, v1, v4, vcc")
        fbase(sT0, sT3); a(f"s_add_u32 s{sT0}, s{sT0}, s{sB}"); a(f"s_lshl_b32 s{sT3}, s{sT0}, 7")
    else:
        a("v_cmp_eq_u32 vcc, 7, v5"); a("v_mov_b32 v4, 0x40000000"); a("v_cndmask_b32 v1, v1, v4, vcc")
        a(f"s_lshl_b32 s{sT0}, s{sKVH}, 2"); a(f"s_add_u32 s{sT0}, s{sT0}, s{sB}"); a(f"s_mul_i32 s{sT3}, s{sT0}, 112")
    a(f"s_lshl_b32 s{sT1}, s{sS}, 7")
    a(f"s_mul_i32 s{sT2}, s{sS}, {64*3584}"); a(f"s_add_u32 s{sT2}, s{sT2}, s{sT3}")
    a("s_waitcnt lgkmcnt(0)")
    epoch_load()
    def w1_loads():
        for t in range(8):
            a(f"buffer_load_dwordx4 {vr(WD+4*t,4)}, v1, s[{sSRD}:{sSRD+3}], s{sT2} offen nt")
            if t < 7: a(f"s_add_u32 s{sT2}, s{sT2}, 3584")
    srd(sSRD, sW1, 512 * 3584)
    w1_loads()
    bar()
    stamp(1)
    a("s_branch L_H1c"); section("H1c"); a("; ---- wave 1: hidden partials"); a.label("L_H1c")
    hconst()
    srd(sSRDW, sWS, WS_SIZE)
    xn_addr(sT1)
    make_tag()
    a(f"s_lshl_b32 s{sO}, s{sKVH}, 5"); a(f"s_add_u32 s{sO}, s{sO}, s{sJ}"); a(f"s_lshl_b32 s{sO}, s{sO}, 10"); a(f"s_add_u32 s{sO}, s{sO}, {HP}")
    a("v_lshlrev_b32 v166, 4, v0")
    lds_wait(F_XN, 1, sleep=1)
    for v in range(2): a(f"ds_read_b128 {vr(XA+4*v,4)}, v{160+v}")
    a("s_waitcnt vmcnt(0) lgkmcnt(0)")
    block8(WD, XA, 16, A16, first=True)
    dense8(A16)
    dense_to_lds(A16, L_OS + 2048)
    a(f"ds_read_b128 {vr(XA,4)}, v166 offset:{L_OS+2048}")
    a("s_waitcnt lgkmcnt(0)")
    bytetag(XA, 4)
    if opt:
        a(f"s_add_u32 s{sO+1}, s{sO}, {OP - HP}")
        for i in range(4): a(f"v_mov_b32 v{XA+4+i}, -1")
        a(f"buffer_store_dwordx4 {vr(XA,4)}, v166, {WSRD}, s{sO} offen")
        a(f"buffer_store_dwordx4 {vr(XA+4,4)}, v166, {WSRD}, s{sO+1} offen")
    stamp(2)
    a("s_branch L_qwait")

    if layout: section("H")
    a.label("L_H23")
    a("s_waitcnt lgkmcnt(0)")
    epoch_load()
    a(f"s_cmp_eq_u32 s{sWAVE}, 3"); a("s_cbranch_scc1 L_H3a")
    srd(sSRDW, sWS, WS_SIZE)
    for i in range(4): a(f"v_mov_b32 v{BT+i}, -1")
    a("v_lshlrev_b32 v1, 4, v0")
    a(f"s_lshl_b32 s{sT1}, s{sKVH}, 5"); a(f"s_add_u32 s{sT1}, s{sT1}, s{sJ}")
    a(f"s_lshl_b32 s{sT2}, s{sT1}, 10"); a(f"s_add_u32 s{sT2}, s{sT2}, {OP}")
    if not lateclr: a(f"buffer_store_dwordx4 {vr(BT,4)}, v1, {WSRD}, s{sT2} offen sc1" + NT("clr"))
    if warm:
        a(f"s_cmp_ge_u32 s{sJ}, (L_exit - L_H3c) / 1024"); a("s_cbranch_scc1 L_nowarm")
        a(f"s_getpc_b64 s[{sT0}:{sT1}]")
        a.label("L_pc")
        a(f"s_add_u32 s{sT0}, s{sT0}, L_exit - L_pc - 1024"); a(f"s_addc_u32 s{sT1}, s{sT1}, 0")
        a(f"s_lshl_b32 s{sT2}, s{sJ}, 10"); a(f"s_sub_u32 s{sT0}, s{sT0}, s{sT2}"); a(f"s_subb_u32 s{sT1}, s{sT1}, 0")
        a("v_lshlrev_b32 v1, 4, v0")
        a(f"global_load_dwordx4 v[8:11], v1, s[{sT0}:{sT1}]")
        a.label("L_nowarm")
    if combine:
        for i in range(2): a(f"ds_write_b128 v1, {vr(BT,4)} offset:{L_X+1024*i}")
        if w2late:
            for i in range(2): a(f"ds_write_b128 v1, {vr(BT,4)} offset:{L_M+1024*i}")
    bar()
    if not lateclr:
        a("s_waitcnt vmcnt(0)")
        lds_signal(F_CLR)
    a("s_branch L_H23b")
    a.label("L_H3a")
    a("v_lshlrev_b32 v160, 10, v2"); a("v_lshl_add_u32 v160, v3, 4, v160")
    srd(sSRD2, sX, 4096)
    for i in range(4): a(f"buffer_load_dwordx4 {vr(WD+4*i,4)}, v160, s[{sSRD2}:{sSRD2+3}], 0 offen offset:{256*i}")
    bar()
    a("s_branch L_H3c"); section("H3c"); a("; ---- wave 3: LayerNorm"); a.label("L_H3c")
    srd(sSRDW, sWS, WS_SIZE)
    a("s_waitcnt vmcnt(0)")
    ln_stats()
    for i in range(4):
        ln_apply(WD + 4*i)
        a(f"ds_write_b128 v160, {vr(WD+4*i,4)} offset:{L_XN+256*i}")
    lds_signal(F_XN)
    a.label("L_H23b")
    if lay2: hconst()
    stamp(1)
    make_tag()
    if layout: a("s_branch L_qwait"); section("rest")
    a.label("L_qwait")
    lds_wait(F_P1, 1, sleep=2)
    a("; ---- helpers: gather q (one head each)"); a.label("L_qgather")
    stamp(3)
    a("v_lshlrev_b32 v1, 4, v0")
    a(f"s_lshl_b32 s{sT1}, s{sKVH}, 2"); a(f"s_add_u32 s{sT1}, s{sT1}, s{sB}"); a(f"s_lshl_b32 s{sT1}, s{sT1}, 2")
    a(f"s_add_u32 s{sT1}, s{sT1}, s{sWAVE}"); a(f"s_lshl_b32 s{sT1}, s{sT1}, 12"); a(f"s_add_u32 s{sT1}, s{sT1}, {QP}")
    a("v_and_b32 v5, 31, v0"); a("v_mul_u32_u24 v33, 6, v5"); a("v_lshrrev_b32 v5, 5, v0"); a("v_lshl_add_u32 v33, v5, 7, v33")
    a(f"s_lshl_b32 s{sT3}, s{sWAVE}, 8"); a(f"v_add_u32 v33, s{sT3}, v33")
    a(f"s_mov_b32 s{sMIX}, 0")
    a("s_mov_b32 exec_lo, 0x003fffff"); a("s_mov_b32 exec_hi, 0x003fffff")
    L = lab("poll"); a.label(L)
    for u in range(4): a(f"buffer_load_dwordx4 {vr(WD+4*u,4)}, v1, {WSRD}, s{sT1} offen offset:{1024*u} sc1")
    a("s_waitcnt vmcnt(0)")
    for u in range(4): a(f"v_xor_b32 v{WD+4*u+3}, s{sTAG}, v{WD+4*u+3}")
    a(f"v_or3_b32 v5, v{WD+3}, v{WD+7}, v{WD+11}"); a(f"v_or_b32 v5, v5, v{WD+15}")
    a("v_cmp_ne_u32 vcc, 0, v5")
    if qpl:
        def need_check(done):
            a(f"global_load_dword v5, v34, s[{sDBG}:{sDBG+1}] sc1"); a("s_waitcnt vmcnt(0)"); a(f"v_readfirstlane_b32 s{sT0}, v5")
            a(f"s_cmp_eq_u32 s{sT0}, 0"); a(f"s_cbranch_scc1 {done}")
            qp_store(" sc1")
        a("s_cbranch_vccz L_qok")
        a(f"s_mov_b64 s[{sM1}:{sM1+1}], vcc"); a("s_mov_b64 exec, -1")
        a(f"s_lshl_b32 s{sT0}, s{sKVH}, 2"); a(f"v_mov_b32 v34, s{sT0}")
        a(f"s_add_u32 s{sMIX}, s{sMIX}, 1"); a(f"s_cmp_lt_u32 s{sMIX}, 3"); a("s_cbranch_scc1 L_qagain")
        a("s_mov_b64 exec, 1"); a(f"global_store_dword v34, v{vONE}, s[{sDBG}:{sDBG+1}] sc1"); a("s_mov_b64 exec, -1")
        a(f"s_cmp_lg_u32 s{sWAVE}, 0"); a("s_cbranch_scc1 L_qagain")
        qp_store(" sc1")
        a.label("L_qagain")
        a(f"s_mov_b64 exec, s[{sM1}:{sM1+1}]")
        a("s_sleep 2"); a(f"s_sub_u32 s{sCNT}, s{sCNT}, 1"); a(f"s_cbranch_scc0 {L}"); a("s_endpgm")
        a.label("L_qok")
    else: retry(L, sleep=2, masked=True)
    if fast:
        a("s_mov_b32 exec_lo, 0x00200000"); a("s_mov_b32 exec_hi, 0x00200000")
        for u in range(4): a(f"v_xor_b32 v{BT+u}, s{sXCC}, v{WD+4*u+1}")
        a(f"v_or3_b32 v5, v{BT}, v{BT+1}, v{BT+2}"); a(f"v_or_b32 v5, v5, v{BT+3}")
        a("v_cmp_ne_u32 vcc, 0, v5"); a("s_cbranch_vccz L_uniform")
        lds_signal(F_MIX)
        a.label("L_uniform")
    a("s_mov_b32 exec_lo, 0x003fffff"); a("s_mov_b32 exec_hi, 0x003fffff")
    for k in range(3):
        a(f"v_add_f32 v{WD+k}, v{WD+k}, v{WD+4+k}"); a(f"v_add_f32 v{WD+8+k}, v{WD+8+k}, v{WD+12+k}")
    for k in range(3): a(f"v_add_f32 v{WD+k}, v{WD+k}, v{WD+8+k}")
    a(f"v_cvt_pk_bf16_f32 v{WD}, v{WD}, v{WD+1}"); a(f"v_cvt_pk_bf16_f32 v{WD+2}, v{WD+2}, v{WD+2}")
    a(f"ds_write_b16 v33, v{WD} offset:{L_Q}")
    a("s_mov_b32 exec_lo, 0x001fffff"); a("s_mov_b32 exec_hi, 0x001fffff")
    a(f"ds_write_b16_d16_hi v33, v{WD} offset:{L_Q+2}"); a(f"ds_write_b16 v33, v{WD+2} offset:{L_Q+4}")
    lds_signal(F_Q)
    stamp(4)
    a(f"s_cmp_eq_u32 s{sWAVE}, 2"); a("s_cbranch_scc1 L_H2b")
    a(f"s_cmp_eq_u32 s{sWAVE}, 3"); a("s_cbranch_scc1 L_H3b")
    a("v_lshlrev_b32 v1, 13, v2"); a("v_lshl_add_u32 v1, v3, 4, v1")
    a(f"s_cmp_eq_u32 s{sWAVE}, 1"); a("s_cbranch_scc1 L_H1b")
    if qpl:
        a(f"s_lshl_b32 s{sT0}, s{sKVH}, 2"); a(f"v_mov_b32 v34, s{sT0}"); a(f"s_mov_b32 s{sT1}, 0")
        a.label("L_watch")
        a(f"ds_read_b32 v5, v{vZ} offset:{F_Q*4}"); a("s_waitcnt lgkmcnt(0)"); a(f"v_readfirstlane_b32 s{sT0}, v5")
        a(f"s_cmp_ge_u32 s{sT0}, 4"); a("s_cbranch_scc1 L_wdone")
        a("s_sleep 4"); a(f"s_add_u32 s{sT1}, s{sT1}, 1"); a(f"s_and_b32 s{sT0}, s{sT1}, 31"); a(f"s_cbranch_scc1 L_wnext")
        need_check("L_wnext")
        a.label("L_wnext")
        a(f"s_sub_u32 s{sCNT}, s{sCNT}, 1"); a("s_cbranch_scc0 L_watch"); a("s_endpgm")
        a.label("L_wdone")
        read_mix(5)
        a(f"s_cmp_eq_u32 s{sMIX}, 0"); a("s_cbranch_scc1 L_proj")
        qp_store(" sc1")
    a("s_branch L_proj")
    a.label("L_H1b")
    assert opt and h1clr
    lds_wait(F_Q, 4, sleep=2)
    read_mix(5)
    a(f"s_cmp_eq_u32 s{sMIX}, 0"); a("s_cbranch_scc1 L_h1u")
    a(f"buffer_store_dwordx4 {vr(XA,4)}, v166, {WSRD}, s{sO} offen sc1")
    a(f"buffer_store_dwordx4 {vr(XA+4,4)}, v166, {WSRD}, s{sO+1} offen sc1")
    a.label("L_h1u")
    a("s_waitcnt vmcnt(0)")
    lds_signal(F_CLR)
    if late_hp and not h1clr:
        lds_wait(F_Q, 4, sleep=2)
        read_mix(5)
        a("v_lshlrev_b32 v166, 4, v0")
        group_store(f"buffer_store_dwordx4 {vr(XA,4)}, v166, {WSRD}, s{sO} offen")
    a("; ---- waves 0/1: output projection"); a.label("L_proj")
    assert combine
    BW, G, SU, AA = 104, 72, 80, 96
    srd(sSRD, sWO, 0x400000)
    a(f"s_lshl_b32 s{sDB}, s{sHF}, 1"); a(f"s_add_u32 s{sDB}, s{sDB}, s{sWAVE}")
    a(f"s_lshl_b32 s{sO}, s{sDB}, 15"); a(f"s_lshl_b32 s{sT2}, s{sCQ}, 8"); a(f"s_add_u32 s{sO}, s{sO}, s{sT2}"); a(f"s_add_u32 s{sO+1}, s{sO}, 4096")
    a("v_bfe_u32 v4, v0, 2, 2"); a("v_and_b32 v5, 3, v0")
    a("v_lshlrev_b32 v137, 10, v4"); a("v_lshl_add_u32 v137, v2, 7, v137")
    a(f"s_lshl_b32 s{sO+2}, s{sKVH}, 12"); a(f"s_bfe_u32 s{sT2}, s{sHF}, 0x10002"); a(f"s_lshl_b32 s{sT2}, s{sT2}, 4")
    a(f"s_add_u32 s{sO+2}, s{sO+2}, s{sT2}"); a(f"s_add_u32 s{sO+2}, s{sO+2}, {ST}")
    a("v_lshlrev_b32 v100, 13, v4"); a("v_lshl_add_u32 v100, v2, 10, v100"); a("v_lshl_add_u32 v100, v5, 4, v100")
    a(f"s_lshl_b32 s{sT3}, s{sKVH}, 15"); a(f"s_and_b32 s{sT4}, s{sDB}, 15"); a(f"s_lshl_b32 s{sT4}, s{sT4}, 6")
    a(f"s_add_u32 s{sT3}, s{sT3}, s{sT4}"); a(f"s_add_u32 s{sT3}, s{sT3}, {OP}"); a(f"s_add_u32 s{sT4}, s{sT3}, 4096")
    a(f"s_lshl_b32 s{sT1}, s{sWAVE}, 8"); a(f"s_add_u32 s{sT1}, s{sT1}, {L_AO}")
    a("v_lshlrev_b32 v101, 6, v4"); a("v_lshl_add_u32 v101, v5, 4, v101"); a("v_lshl_add_u32 v101, v2, 2, v101"); a(f"v_add_u32 v101, s{sT1}, v101")
    a("v_lshlrev_b32 v5, 6, v5"); a("v_lshl_add_u32 v5, v2, 4, v5"); a(f"v_add_u32 v5, s{sT1}, v5"); a(f"v_mov_b32 v4, {L_ZERO}")
    for g in range(4): a(f"v_cndmask_b32 v{AA+g}, v4, v5, s[{sM+2*g}:{sM+2*g+1}]")
    a("v_lshlrev_b32 v138, 4, v0")
    if numa:
        a(f"s_lshl_b32 s{sT2}, s{sCQ}, 18"); a(f"s_lshr_b32 s{sT1}, s{sDB}, 3"); a(f"s_lshl_b32 s{sT1}, s{sT1}, 14"); a(f"s_add_u32 s{sT2}, s{sT2}, s{sT1}")
        a(f"s_and_b32 s{sT1}, s{sDB}, 7"); a(f"s_lshl_b32 s{sT1}, s{sT1}, 10")
    else:
        a(f"s_lshl_b32 s{sT2}, s{sCQ}, 17"); a(f"s_lshl_b32 s{sT1}, s{sDB}, 10")
    a(f"s_add_u32 s{sT5}, s{sT1}, s{sT2}"); a(f"s_add_u32 s{sT5}, s{sT5}, {FP}"); a(f"s_add_u32 s{sO+3}, s{sT5}, 8192")
    a(f"s_lshl_b32 s{sT1}, s{sWAVE}, 10"); a(f"v_add_u32 v103, s{sT1}, v138"); a(f"v_xor_b32 v136, 1024, v103")
    a(f"v_mov_b32 v102, s{sHI}")
    if own_touch and "fp" in touch: a(f"buffer_load_dwordx4 {vr(G,4)}, v138, {WSRD}, s{sT5} offen")
    if "wo" in touch:
        a("s_mov_b64 exec, 1"); a(f"buffer_load_dword v139, v{vZ}, s[{sSRD}:{sSRD+3}], s{sO} offen nt"); a("s_mov_b64 exec, -1")
    lds_wait(F_FW, 1, sleep=4)
    if wo_sig is not None: lds_wait(F_WO, 1, sleep=1)
    if stfirst:
        a("s_setprio 3")
        def st_loads():
            for u in range(2): a(f"buffer_load_dwordx4 {vr(144+4*u,4)}, v137, {WSRD}, s{sO+2} offen offset:{512*u} sc1")
        def op_loads():
            for u in range(2): a(f"buffer_load_dwordx4 {vr(G+4*u,4)}, v100, {WSRD}, s{sT3+u} offen sc1")
        def weights():
            E = lab("ev")
            a(f"s_bitcmp1_b32 s{sHF}, 1"); a(f"s_cbranch_scc0 {E}")
            for u in range(2):
                a(f"v_mov_b32 v{144+4*u}, v{146+4*u}"); a(f"v_mov_b32 v{145+4*u}, v{147+4*u}")
            a.label(E)
            a("v_max_f32 v146, v144, v148")
            allreduce("v_max_f32", 146, 147, ['p16', 'p32'])
            a(f"s_mov_b32 s{sT0}, 0x3fb8aa3b")
            a("v_sub_f32 v144, v144, v146"); a("v_sub_f32 v148, v148, v146")
            a(f"v_mul_f32 v144, s{sT0}, v144"); a(f"v_mul_f32 v148, s{sT0}, v148")
            a("v_exp_f32 v144, v144"); a("v_exp_f32 v148, v148")
            a("v_mul_f32 v146, v144, v145"); a("v_fmac_f32 v146, v148, v149")
            allreduce("v_add_f32", 146, 147, ['p16', 'p32'])
            a("v_rcp_f32 v146, v146")
            a("v_mul_f32 v140, v144, v146"); a("v_mul_f32 v142, v148, v146")
            a("v_mov_b32 v141, v140"); a("v_mov_b32 v143, v142")
        st_loads()
        for t in range(8):
            a(f"buffer_load_dwordx4 {vr(WD+4*t,4)}, v1, s[{sSRD}:{sSRD+3}], s{sO + (t >> 2)} offen offset:{(t&3)*1024} nt")
        lds_wait(F_MLP, 1, sleep=1)
        for i in range(4): a(f"v_mov_b32 v{SU+i}, 0")
        a(f"ds_read_b128 {vr(SU+4,4)}, v103 offset:{L_M}")
        a("s_waitcnt lgkmcnt(0)")
        a(f"s_cmp_eq_u32 s{sWAVE}, 1"); a(f"s_cselect_b64 vcc, -1, 0")
        for i in range(4):
            a(f"v_cndmask_b32 v{ACC+i}, v{SU+4+i}, v{SU+i}, vcc"); a(f"v_cndmask_b32 v{ACC+4+i}, v{SU+i}, v{SU+4+i}, vcc")
        a("s_waitcnt vmcnt(8)")
        untag(144, 8, 5)
        a(f"s_mov_b64 s[{sM1}:{sM1+1}], vcc")
        a("s_cbranch_vccnz L_stmiss")
        op_loads()
        weights()
        a("s_branch L_perms")
        a.label("L_stmiss")
        a("s_mov_b64 exec, vcc")
        st_loads()
        a("s_mov_b64 exec, -1")
        a.label("L_perms")
        for m in range(4):
            a(f"s_waitcnt vmcnt({8-2*m})")
            for e in range(8):
                a(f"v_perm_b32 v{BW+4*e+m}, v{WD+4*(2*m+1)+(e>>1)}, v{WD+4*(2*m)+(e>>1)}, s{sSELHI if e & 1 else sSELLO}")
        a(f"s_cmp_eq_u64 s[{sM1}:{sM1+1}], 0"); a("s_cbranch_scc1 L_stok")
        a(f"s_mov_b64 exec, s[{sM1}:{sM1+1}]")
        a("s_branch L_stchk")
        L = lab("poll"); a.label(L)
        st_loads()
        a.label("L_stchk")
        a("s_waitcnt vmcnt(0)")
        untag(144, 8, 5)
        retry(L, sleep=4, masked=True)
        op_loads()
        weights()
        a.label("L_stok")
    else:
        a("s_setprio 3")
        for t in range(8):
            a(f"buffer_load_dwordx4 {vr(WD+4*t,4)}, v1, s[{sSRD}:{sSRD+3}], s{sO + (t >> 2)} offen offset:{(t&3)*1024} nt")
        for u in range(2): a(f"buffer_load_dwordx4 {vr(144+4*u,4)}, v137, {WSRD}, s{sO+2} offen offset:{512*u} sc1")
        if w2late:
            if w2_sig is None: lds_signal(F_W2)
            for i in range(8): a(f"v_mov_b32 v{ACC+i}, 0")
        else:
            lds_wait(F_MLP, 1, sleep=1)
            for i in range(4): a(f"v_mov_b32 v{SU+i}, 0")
            a(f"ds_read_b128 {vr(SU+4,4)}, v103 offset:{L_M}")
            a("s_waitcnt lgkmcnt(0)")
            a(f"s_cmp_eq_u32 s{sWAVE}, 1"); a(f"s_cselect_b64 vcc, -1, 0")
            for i in range(4):
                a(f"v_cndmask_b32 v{ACC+i}, v{SU+4+i}, v{SU+i}, vcc"); a(f"v_cndmask_b32 v{ACC+4+i}, v{SU+i}, v{SU+4+i}, vcc")
        for m in range(4):
            a(f"s_waitcnt vmcnt({8-2*m})")
            for e in range(8):
                a(f"v_perm_b32 v{BW+4*e+m}, v{WD+4*(2*m+1)+(e>>1)}, v{WD+4*(2*m)+(e>>1)}, s{sSELHI if e & 1 else sSELLO}")
        a("s_branch L_stchk")
        L = lab("poll"); a.label(L)
        for u in range(2): a(f"buffer_load_dwordx4 {vr(144+4*u,4)}, v137, {WSRD}, s{sO+2} offen offset:{512*u} sc1")
        a.label("L_stchk")
        a("s_waitcnt vmcnt(0)")
        untag(144, 8, 5)
        retry(L, sleep=4, masked=True)
        for u in range(2): a(f"buffer_load_dwordx4 {vr(G+4*u,4)}, v100, {WSRD}, s{sT3+u} offen sc1")
        a(f"s_bitcmp1_b32 s{sHF}, 1"); a("s_cbranch_scc0 L_evenh")
        for u in range(2):
            a(f"v_mov_b32 v{144+4*u}, v{146+4*u}"); a(f"v_mov_b32 v{145+4*u}, v{147+4*u}")
        a.label("L_evenh")
        a("v_max_f32 v146, v144, v148")
        allreduce("v_max_f32", 146, 147, ['p16', 'p32'])
        a(f"s_mov_b32 s{sT0}, 0x3fb8aa3b")
        a("v_sub_f32 v144, v144, v146"); a("v_sub_f32 v148, v148, v146")
        a(f"v_mul_f32 v144, s{sT0}, v144"); a(f"v_mul_f32 v148, s{sT0}, v148")
        a("v_exp_f32 v144, v144"); a("v_exp_f32 v148, v148")
        a("v_mul_f32 v146, v144, v145"); a("v_fmac_f32 v146, v148, v149")
        allreduce("v_add_f32", 146, 147, ['p16', 'p32'])
        a("v_rcp_f32 v146, v146")
        a("v_mul_f32 v140, v144, v146"); a("v_mul_f32 v142, v148, v146")
        a("v_mov_b32 v141, v140"); a("v_mov_b32 v143, v142")
    stamp(3)
    a("s_branch L_opchk")
    L = lab("poll"); a.label(L)
    for u in range(2): a(f"buffer_load_dwordx4 {vr(G+4*u,4)}, v100, {WSRD}, s{sT3+u} offen sc1")
    a.label("L_opchk")
    a("s_waitcnt vmcnt(0)")
    a(f"v_max3_u32 v4, v{G}, v{G+1}, v{G+2}"); a(f"v_max3_u32 v5, v{G+3}, v{G+4}, v{G+5}")
    a(f"v_max3_u32 v4, v4, v{G+6}, v{G+7}"); a("v_max_u32 v4, v4, v5")
    a("v_cmp_eq_u32 vcc, -1, v4")
    retry(L, masked=True)
    stamp(6)
    for i in range(4):
        a(f"v_lshlrev_b32 v{SU+2*i}, 16, v{G+i}"); a(f"v_and_b32 v{SU+2*i+1}, 0xffff0000, v{G+i}")
    for i in range(4):
        a(f"v_lshlrev_b32 v{SU+8+2*i}, 16, v{G+4+i}"); a(f"v_and_b32 v{SU+8+2*i+1}, 0xffff0000, v{G+4+i}")
        a(f"v_pk_mul_f32 {vr(SU+2*i,2)}, {vr(SU+2*i,2)}, v[140:141]")
    for i in range(4): a(f"v_pk_fma_f32 {vr(SU+2*i,2)}, {vr(SU+8+2*i,2)}, v[142:143], {vr(SU+2*i,2)}")
    reduce8to2(SU)
    a(f"v_cvt_pk_bf16_f32 v5, v{SU}, v{SU+1}")
    a("ds_write_b32 v101, v5")
    for g in range(4): a(f"ds_read_b128 {vr(AV+4*g,4)}, v{AA+g}")
    a(f"s_cmp_eq_u32 s{sWAVE}, 1"); a("s_cbranch_scc1 L_keep1")
    for keep in range(2):
        if keep == 1: a.label("L_keep1")
        give = 1 - keep
        for n in range(8):
            ac = give if n < 4 else keep
            g = n & 3
            if n < 4: a(f"s_waitcnt lgkmcnt({3-g})")
            a(f"v_mfma_f32_16x16x32_bf16 {vr(ACC+4*ac,4)}, {vr(AV+4*g,4)}, {vr(BW+4*(4*ac+g),4)}, {vr(ACC+4*ac,4)}")
        for i in range(4): a(f"v_min_u32 v{ACC+4*give+i}, 0xfffffffe, v{ACC+4*give+i}")
        a(f"ds_write_b128 v136, {vr(ACC+4*give,4)} offset:{L_X}")
        L = lab("xp"); a.label(L)
        a(f"ds_read_b128 {vr(G,4)}, v103 offset:{L_X}")
        if w2late: a(f"ds_read_b128 {vr(G+4,4)}, v103 offset:{L_M}")
        a("s_waitcnt lgkmcnt(0)")
        if w2late:
            a(f"v_max3_u32 v4, v{G}, v{G+1}, v{G+2}"); a(f"v_max3_u32 v5, v{G+3}, v{G+4}, v{G+5}"); a(f"v_max3_u32 v4, v4, v{G+6}, v{G+7}"); a("v_max_u32 v4, v4, v5")
        else:
            a(f"v_max3_u32 v4, v{G}, v{G+1}, v{G+2}"); a(f"v_max_u32 v4, v4, v{G+3}")
        a("v_cmp_eq_u32 vcc, -1, v4")
        retry(L)
        if w2late:
            for i in (0, 2): a(f"v_pk_add_f32 {vr(G+i,2)}, {vr(G+4+i,2)}, {vr(G+i,2)}")
        for i in (0, 2): a(f"v_pk_add_f32 {vr(G+i,2)}, {vr(ACC+4*keep+i,2)}, {vr(G+i,2)}")
        for i in range(4): a(f"v_and_or_b32 v{G+i}, v{G+i}, v102, s{sTB+(i&3)}")
        a(f"buffer_store_dwordx4 {vr(G,4)}, v138, {WSRD}, s{sT5} offen sc1")
        if numa: a(f"buffer_store_dwordx4 {vr(G,4)}, v138, {WSRD}, s{sO+3} offen sc1")
        lds_signal(F_FP)
        stamp(7)
        finish_wave()

    a("; ---- wave 3: workgroup statistics"); a.label("L_H3b")
    a("v_and_b32 v4, 7, v0"); a("v_lshlrev_b32 v1, 4, v4"); a("v_lshlrev_b32 v4, 3, v4")
    a(f"s_lshl_b32 s{sT1}, s{sKVH}, 5"); a(f"s_add_u32 s{sT1}, s{sT1}, s{sJ}"); a(f"s_lshl_b32 s{sT1}, s{sT1}, 7"); a(f"s_add_u32 s{sT1}, s{sT1}, {ST}")
    lds_wait(F_STAT, 4, sleep=2)
    if fast: read_mix(5)
    if lateclr: lds_wait(F_CLR, 1, sleep=2)
    stamp(5)
    a(f"ds_read_b128 v[8:11], v1 offset:{L_ST}")
    a("s_waitcnt lgkmcnt(0)")
    a("v_mov_b32 v12, v8"); a("v_mov_b32 v14, v10")
    for x in (12, 14): allreduce("v_max_f32", x, 16, ['q2', 'r4'])
    a(f"s_mov_b32 s{sT0}, 0x3fb8aa3b")
    a("v_sub_f32 v8, v8, v12"); a("v_sub_f32 v10, v10, v14")
    a(f"v_mul_f32 v8, s{sT0}, v8"); a(f"v_mul_f32 v10, s{sT0}, v10")
    a("v_exp_f32 v16, v8"); a("v_exp_f32 v17, v10")
    a("v_mul_f32 v13, v16, v9"); a("v_mul_f32 v15, v17, v11")
    a(f"ds_write_b64 v4, v[16:17] offset:{L_FW}")
    for x in (13, 15): allreduce("v_add_f32", x, 18, ['q2', 'r4'])
    bytetag(12, 4)
    a("s_mov_b64 exec, 3")
    group_store(f"buffer_store_dwordx4 v[12:15], v1, {WSRD}, s{sT1} offen")
    lds_signal(F_FW)
    if two: a("s_branch L_final")
    else:
        stamp(6); stamp(7)
        finish_wave()

    a("; ---- wave 2: MLP second half"); a.label("L_H2b")
    if lateclr and not h1clr:
        a(f"s_lshl_b32 s{sT1}, s{sKVH}, 5"); a(f"s_add_u32 s{sT1}, s{sT1}, s{sJ}"); a(f"s_lshl_b32 s{sT2}, s{sT1}, 10"); a(f"s_add_u32 s{sT2}, s{sT2}, {OP}")
        for i in range(4): a(f"v_mov_b32 v{BT+i}, -1")
        lds_wait(F_Q, 4, sleep=2)
        read_mix(5)
        group_store(f"buffer_store_dwordx4 {vr(BT,4)}, v1, {WSRD}, s{sT2} offen")
    assert lateclr
    a("v_lshlrev_b32 v1, 13, v2"); a("v_lshl_add_u32 v1, v3, 4, v1")
    HG = WD + 32
    srd(sSRD, sW2, 1792 * 1024)
    if al == 2:
        a(f"s_cmp_lg_u32 s{sKVH}, {free}"); a("s_cbranch_scc1 L_mlp")
        for i in range(4): a(f"v_mov_b32 v{ACC+i}, 0")
        a("v_lshlrev_b32 v4, 4, v0")
        for i in range(2): a(f"ds_write_b128 v4, {vr(ACC,4)} offset:{L_M+1024*i}")
        a("s_branch L_final")
        a.label("L_mlp")
        a(f"s_mov_b32 s{sT3}, 4"); a("v_mov_b32 v5, v1")
        a(f"s_and_b32 s{sT4}, s{sHF}, 7"); a(f"s_lshl_b32 s{sT4}, s{sT4}, 5")
        fbase7(sT1); a(f"s_lshl_b32 s{sT1}, s{sT1}, 6"); a(f"s_add_u32 s{sT1}, s{sT1}, s{sT4}"); a(f"s_lshl_b32 s{sT1}, s{sT1}, 10")
    elif al:
        light_scc(); a(f"s_cselect_b32 s{sT3}, 3, 4")
        a(f"v_cmp_le_u32 vcc, s{sT3}, v2"); a("v_mov_b32 v5, 0x40000000"); a("v_cndmask_b32 v1, v1, v5, vcc"); a("v_mov_b32 v5, v1")
        a(f"s_and_b32 s{sT4}, s{sHF}, 7"); a(f"s_mul_i32 s{sT4}, s{sT4}, s{sT3}"); a(f"s_lshl_b32 s{sT4}, s{sT4}, 3")
        fbase(sT1, sT2); a(f"s_lshl_b32 s{sT1}, s{sT1}, 6"); a(f"s_add_u32 s{sT1}, s{sT1}, s{sT4}"); a(f"s_lshl_b32 s{sT1}, s{sT1}, 10")
    else:
        a("v_cmp_eq_u32 vcc, 3, v2"); a("v_mov_b32 v5, 0x40000000"); a("v_cndmask_b32 v5, v1, v5, vcc")
        a(f"s_mul_i32 s{sT1}, s{sHF}, {28*1024}")
    a(f"s_lshl_b32 s{sT2}, s{sCQ}, 8"); a(f"s_add_u32 s{sT1}, s{sT1}, s{sT2}"); a(f"s_add_u32 s{sT2}, s{sT1}, 4096")
    W2S = 64
    def w2_loads(srd_, o0, o1, va, vb):
        for t in range(8):
            a(f"buffer_load_dwordx4 {vr(104+4*t if w2late else WD+4*t,4)}, v{va if t < 4 else vb}, s[{srd_}:{srd_+3}], s{o0 if t < 4 else o1} offen offset:{(t&3)*1024} nt")
    if w2late:
        srd(W2S, sW2, 1792 * 1024); a(f"s_mov_b32 s{W2S+4}, s{sT1}"); a(f"s_mov_b32 s{W2S+5}, s{sT2}"); a("v_mov_b32 v138, v1"); a("v_mov_b32 v139, v5")
    else: w2_loads(sSRD, sT1, sT2, 1, 5)
    a("v_lshrrev_b32 v4, 3, v0"); a("v_lshlrev_b32 v4, 10, v4")
    a("v_and_b32 v33, 7, v0")
    if al:
        a(f"s_lshl_b32 s{sT3}, s{sT3}, 1"); a(f"s_sub_u32 s{sT2}, s{sT3}, 1"); a(f"v_min_u32 v5, s{sT2}, v33"); a("v_lshlrev_b32 v5, 2, v5"); a(f"v_add_u32 v5, s{sT4}, v5")
        a("v_lshrrev_b32 v34, 6, v5"); a("v_lshl_add_u32 v4, v34, 13, v4"); a("v_and_b32 v5, 63, v5"); a("v_lshl_add_u32 v4, v5, 2, v4")
        a(f"s_lshl_b32 s{sT1}, s{sKVH}, 15"); a(f"s_add_u32 s{sT1}, s{sT1}, {HP}")
    else:
        a("v_min_u32 v5, 6, v33"); a("v_lshl_add_u32 v4, v5, 4, v4")
        a(f"s_lshr_b32 s{sT1}, s{sHF}, 1"); a(f"s_lshl_b32 s{sT1}, s{sT1}, 13"); a(f"s_and_b32 s{sT2}, s{sHF}, 1"); a(f"s_mul_i32 s{sT2}, s{sT2}, 112")
        a(f"s_add_u32 s{sT1}, s{sT1}, s{sT2}"); a(f"s_add_u32 s{sT1}, s{sT1}, {HP}")
    if not h1clr:
        a("s_waitcnt vmcnt(8)")
        lds_signal(F_CLR)
    L = lab("poll"); a.label(L)
    for u in range(4): a(f"buffer_load_dwordx4 {vr(HG+16+4*u,4)}, v4, {WSRD}, s{sT1} offen offset:{256*u} sc1")
    a("s_waitcnt vmcnt(0)")
    untag(HG + 16, 16, BT)
    retry(L, sleep=2, masked=True)
    for b in range(2):
        for i in range(4): a(f"v_mov_b32 v{HG+8*b+i}, v{HG+16+4*b+i}")
    for i in range(4): a(f"v_mov_b32 v{HG+16+i}, v{HG+24+i}")
    for i in range(4): a(f"v_mov_b32 v{HG+24+i}, v{HG+28+i}")
    for b in range(2):
        for i in range(4): a(f"v_permlane32_swap_b32 v{HG+8*b+i}, v{HG+8*(b+2)+i}")
    for b in range(2):
        for i in (0, 2): a(f"v_pk_add_f32 {vr(HG+8*b+i,2)}, {vr(HG+8*b+i,2)}, {vr(HG+8*(b+2)+i,2)}")
    for i in range(4): a(f"v_permlane16_swap_b32 v{HG+i}, v{HG+8+i}")
    for i in (0, 2): a(f"v_pk_add_f32 {vr(HG+i,2)}, {vr(HG+i,2)}, {vr(HG+8+i,2)}")
    for i in range(4): a(f"v_add_f32_dpp v{HG+i}, v{HG+i}, v{HG+i} row_ror:8 {DPPM}")
    for i in range(2): a(f"v_cvt_pk_bf16_f32 v{HG+8+i}, v{HG+2*i}, v{HG+2*i+1}")
    for i in range(2):
        a(f"v_lshlrev_b32 v{HG+2*i}, 16, v{HG+8+i}"); a(f"v_and_b32 v{HG+2*i+1}, 0xffff0000, v{HG+8+i}")
    a(f"s_mov_b32 s{sT0}, 0xbfb8aa3b")
    for i in range(4): a(f"v_mul_f32 v{HG+8+i}, s{sT0}, v{HG+i}")
    for i in range(4): a(f"v_exp_f32 v{HG+8+i}, v{HG+8+i}")
    for i in range(4): a(f"v_add_f32 v{HG+8+i}, 1.0, v{HG+8+i}")
    for i in range(4): a(f"v_rcp_f32 v{HG+8+i}, v{HG+8+i}")
    for i in range(4): a(f"v_mul_f32 v{HG+i}, v{HG+i}, v{HG+8+i}")
    for i in range(2): a(f"v_cvt_pk_bf16_f32 v{HG+8+i}, v{HG+2*i}, v{HG+2*i+1}")
    a(f"v_cmp_le_u32 vcc, s{sT3}, v33" if al else "v_cmp_eq_u32 vcc, 7, v33")
    for i in range(2): a(f"v_cndmask_b32 v{HG+8+i}, v{HG+8+i}, 0, vcc")
    a("v_lshlrev_b32 v4, 6, v2"); a("v_lshl_add_u32 v4, v33, 3, v4")
    a(f"ds_write_b64 v4, {vr(HG+8,2)} offset:{L_AH}")
    a("v_and_b32 v5, 3, v0"); a("v_lshlrev_b32 v5, 6, v5"); a("v_lshl_add_u32 v5, v2, 4, v5"); a(f"v_add_u32 v5, {L_AH}, v5"); a(f"v_mov_b32 v4, {L_ZERO}")
    for g in range(4): a(f"v_cndmask_b32 v{HG+g}, v4, v5, s[{sM+2*g}:{sM+2*g+1}]")
    for g in range(4): a(f"ds_read_b128 {vr(AV+4*g,4)}, v{HG+g}")
    a("s_waitcnt lgkmcnt(0)")
    def w2_finish():
        if w2late:
            lds_wait(F_W2, 2 if w2_sig is None else 1, sleep=1)
            w2_loads(W2S, W2S+4, W2S+5, 138, 139)
            if tlate:
                for u in range(2): a(f"buffer_load_dwordx4 {vr(56+4*u,4)}, v1, {WSRD}, s{(sT5, 54)[u]} offen")
            PB, D = 72, 104
            for m in range(4):
                a(f"s_waitcnt vmcnt({(8 if tlate else 6)-2*m})")
                for e in range(8):
                    a(f"v_perm_b32 v{PB+4*e+m}, v{D+4*(2*m+1)+(e>>1)}, v{D+4*(2*m)+(e>>1)}, s{sSELHI if e & 1 else sSELLO}")
            seen = set()
            for e in (0, 4, 1, 5, 2, 6, 3, 7):
                ac, g = emap(e, 'A')
                c = vr(ACC+4*ac, 4) if ac in seen else "0"; seen.add(ac)
                a(f"v_mfma_f32_16x16x32_bf16 {vr(ACC+4*ac,4)}, {vr(AV+4*g,4)}, {vr(PB+4*e,4)}, {c}")
            for i in range(8): a(f"v_min_u32 v{ACC+i}, 0xfffffffe, v{ACC+i}")
        else: block(WD, AV, BT, ACC, 'A', first=True)
        a("v_lshlrev_b32 v4, 4, v0")
        for i in range(2): a(f"ds_write_b128 v4, {vr(ACC+4*i,4)} offset:{L_M+1024*i}")
        if not w2late: lds_signal(F_MLP)
        stamp(2)
    if not w2late: w2_finish()
    a("; ---- wave 2: final reduction"); a.label("L_final")
    I = 1 << fk
    nparts = 64 if combine else 128
    nld = nparts * I // 64
    if fk > 1:
        a(f"s_cmp_lt_u32 s{sJ}, {64 // I}"); a("s_cbranch_scc1 L_fin")
        stamp(5); stamp(6); stamp(7)
        finish_wave()
        a.label("L_fin")
    assert fk == 1
    a(f"s_lshr_b32 s{sT0}, s{sKVH}, 1"); a(f"s_lshr_b32 s{sT1}, s{sJ}, 4")
    a(f"s_bfe_u32 s{sT2}, s{sJ}, 0x20002"); a(f"s_lshl_b32 s{sT2}, s{sT2}, 4"); a(f"s_and_b32 s{sT3}, s{sKVH}, 1"); a(f"s_lshl_b32 s{sT3}, s{sT3}, 3")
    a(f"s_add_u32 s{sT2}, s{sT2}, s{sT3}"); a(f"s_lshl_b32 s{sT3}, s{sCQ}, 1"); a(f"s_add_u32 s{sT2}, s{sT2}, s{sT3}")
    a(f"v_and_b32 v4, 1, v0"); a(f"v_add_u32 v4, s{sT2}, v4")
    if numa:
        a("v_lshrrev_b32 v5, 3, v0"); a("v_lshlrev_b32 v5, 14, v5"); a("v_bfe_u32 v1, v0, 1, 2"); a("v_lshl_add_u32 v5, v1, 11, v5"); a("v_lshl_add_u32 v1, v4, 4, v5")
    else:
        a(f"v_lshrrev_b32 v5, {fk}, v0"); a("v_lshlrev_b32 v5, 11, v5"); a("v_lshl_add_u32 v1, v4, 4, v5")
    a(f"s_lshl_b32 s{sT2}, s{sT0}, {18 if numa else 17}"); a(f"s_lshl_b32 s{sT3}, s{sT1}, 10"); a(f"s_add_u32 s{sT2}, s{sT2}, s{sT3}"); a(f"s_add_u32 s{sT5}, s{sT2}, {FP}")
    sso = [sT5] + list(range(54, 62))
    for u in range(1, nld): a(f"s_add_u32 s{sso[u]}, s{sT5}, {(2 if numa else 1)*2048*(64//I)*u}")
    if numa:
        for u in range(2): a(f"s_add_u32 s{sso[2+u]}, s{sso[u]}, 8192")
    a("v_and_b32 v5, 15, v4"); a("v_lshlrev_b32 v5, 3, v5"); a("v_lshrrev_b32 v4, 4, v4"); a("v_add_u32 v4, v4, v5")
    a(f"s_lshl_b32 s{sT0}, s{sT0}, 7"); a(f"s_lshl_b32 s{sT1}, s{sT1}, 2"); a(f"s_add_u32 s{sT0}, s{sT0}, s{sT1}")
    a(f"v_add_u32 v4, s{sT0}, v4"); a("v_lshlrev_b32 v4, 1, v4"); a("v_lshl_add_u32 v30, v2, 10, v4")
    srd(sSRD, sX, 4096); srd(sSRD2, sOUT, 4096)
    a(f"buffer_load_ushort v31, v30, s[{sSRD}:{sSRD+3}], 0 offen")
    if "out" in touch: a(f"buffer_load_ushort v32, v30, s[{sSRD2}:{sSRD2+3}], 0 offen")
    if "fp" in touch and not tlate and not own_touch:
        if two: a(f"s_cmp_eq_u32 s{sWAVE}, 3"); a("s_cbranch_scc1 L_nofp")
        for u in range(4 if numa else 2): a(f"buffer_load_dwordx4 {vr(56+4*u,4)}, v1, {WSRD}, s{sso[u]} offen")
    if two and "fp" in touch: a.label("L_nofp")
    a(f"v_mov_b32 v29, s{sTAG}")
    a("s_setprio 3")
    assert w2late
    if al == 2: a(f"s_cmp_eq_u32 s{sKVH}, {free}"); a("s_cbranch_scc1 L_now2")
    w2_finish()
    if al == 2: a.label("L_now2"); a("s_waitcnt vmcnt(0)")
    a("v_lshlrev_b32 v31, 16, v31")
    lds_wait(F_FP, 2, sleep=1)
    stamp(5)
    FD = 40
    if pipe2:
        assert nld == 2
        GA, GB, sMISS = 56, 64, sM1
        def issue(Rg):
            cp = 2 * (((Rg - 56) // 8) & 1) if numa else 0
            for u in range(nld): a(f"buffer_load_dwordx4 {vr(Rg+4*u,4)}, v1, {WSRD}, s{sso[cp+u]} offen sc1")
        def take(Rg, done):
            a(f"s_waitcnt vmcnt({2*(depth-1)})")
            untag(Rg, 8, 8)
            a(f"s_andn2_b64 exec, exec, vcc")
            for i in range(8): a(f"v_mov_b32 v{FD+i}, v{Rg+i}")
            a(f"s_mov_b64 exec, vcc")
            a(f"s_cbranch_vccz {done}")
            issue(Rg)
        LP, DN = lab("poll"), lab("d")
        sets = [56 + 8*i for i in range(depth)]
        if two:
            a(f"s_cmp_lg_u32 s{sWAVE}, 3"); a("s_cbranch_scc1 L_nst"); a(f"s_sleep {max(stag // 2, 1)}"); a.label("L_nst")
        for i, Rg in enumerate(sets):
            if i and stag: a(f"s_sleep {stag}")
            issue(Rg)
        a.label(LP)
        for Rg in sets: take(Rg, DN)
        a(f"s_sub_u32 s{sCNT}, s{sCNT}, 1"); a(f"s_cbranch_scc0 {LP}"); a("s_endpgm")
        a.label(DN)
        a("s_mov_b64 exec, -1")
    else:
        if first_plain:
            for u in range(nld): a(f"buffer_load_dwordx4 {vr(FD+4*u,4)}, v1, {WSRD}, s{sso[u]} offen")
            a("s_branch L_fchk")
        L = lab("poll"); a.label(L)
        for u in range(nld): a(f"buffer_load_dwordx4 {vr(FD+4*u,4)}, v1, {WSRD}, s{sso[u]} offen sc1" + NT("fld"))
        if first_plain: a.label("L_fchk")
        a("s_waitcnt vmcnt(0)")
        untag(FD, 4*nld, 8)
        retry(L, sleep=fin_sleep, masked=True)
    stamp(6)
    n = nld
    while n > 1:
        n //= 2
        for u in range(n):
            for i in (0, 2): a(f"v_pk_add_f32 {vr(FD+4*u+i,2)}, {vr(FD+4*u+i,2)}, {vr(FD+4*(u+n)+i,2)}")
    a(f"v_permlane32_swap_b32 v{FD}, v{FD+2}"); a(f"v_permlane32_swap_b32 v{FD+1}, v{FD+3}")
    a(f"v_pk_add_f32 {vr(FD,2)}, {vr(FD,2)}, {vr(FD+2,2)}")
    a(f"v_permlane16_swap_b32 v{FD}, v{FD+1}")
    a(f"v_add_f32 v8, v{FD}, v{FD+1}")
    allreduce("v_add_f32", 8, 9, ['q2', 'r4', 'r8'][fk-1:])
    a("v_add_f32 v8, v8, v31")
    a("v_cvt_pk_bf16_f32 v8, v8, v8")
    m = ((1 << I) - 1) * 0x00010001
    a(f"s_mov_b32 exec_lo, {hex(m)}"); a(f"s_mov_b32 exec_hi, {hex(m)}")
    a(f"buffer_store_short v8, v30, s[{sSRD2}:{sSRD2+3}], 0 offen")
    a("s_cmp_lg_u32 s2, 0"); a("s_cbranch_scc1 L_noep")
    a("s_mov_b64 exec, 1")
    a(f"buffer_store_dword v29, v{vZ}, {WSRD}, 0 offen offset:{EP} sc1")
    a.label("L_noep")
    a("s_mov_b64 exec, -1")
    stamp(7)
    finish_wave()

    if stamps:
        a.label("L_stamp_out")
        a("s_mov_b64 exec, -1")
        a("s_waitcnt vmcnt(0) lgkmcnt(0)")
        for k in range(8): a(f"v_mov_b32 v{8+k}, s{sSTAMP+2*k}")
        a(f"s_mul_i32 s{sT0}, s2, 12"); a(f"s_add_u32 s{sT0}, s{sT0}, s{sWAVE}"); a(f"s_lshl_b32 s{sT0}, s{sT0}, 5"); a(f"s_add_u32 s{sT0}, s{sT0}, {STAMP}")
        a("s_mov_b64 exec, 1")
        a(f"buffer_store_dwordx4 v[8:11], v{vZ}, {WSRD}, s{sT0} offen")
        a(f"buffer_store_dwordx4 v[12:15], v{vZ}, {WSRD}, s{sT0} offen offset:16")
    a.label("L_exit")
    a("s_endpgm")
    order = ["pro", "H"] + (["K1"] if lay2 else []) + ["H3c", "H0c", "H1c", "V", "K2", "rest"]
    a.L = [ln for k in order for ln in secs[k]]
    body = a.finish()
    txt = HEADER + f"; @launch grid=(256,1,1) block=(768,1,1) lds={LDS_BYTES}\n"
    txt += '.amdgcn_target "amdgcn-amd-amdhsa--gfx950"\n' + DOC.lstrip("\n") + '.text\n'
    txt += f".globl {NAME}_kernel\n.p2align 8\n.type {NAME}_kernel,@function\n" + body
    txt += f'''.section .rodata,"a"
.p2align 6
.amdhsa_kernel {NAME}_kernel
  .amdhsa_next_free_vgpr 168
  .amdhsa_next_free_sgpr 102
  .amdhsa_accum_offset 168
  .amdhsa_group_segment_fixed_size 0
  .amdhsa_kernarg_size 88
  .amdhsa_user_sgpr_count 2
  .amdhsa_user_sgpr_kernarg_segment_ptr 1
  .amdhsa_system_sgpr_workgroup_id_x 1
  .amdhsa_float_denorm_mode_32 3
.end_amdhsa_kernel
'''
    return txt

U_ = dict(pk=0, pv=0, kgate=True, wo_sig=31, touch=("out", "fp", "v", "wo"), xlast=True, kpre=3)
U_["rot"] = 0
U_["touch"] = ("fp",)
U_["qpl"] = True
U_["al"] = False
U_["stag"] = 0
U_["al"] = 2
if __name__ == "__main__":
    open("fin.s", "w").write(gen(**U_))
    open("fins.s", "w").write(gen(stamps=True, **U_))
    open("cdna_kernels/" + NAME + ".s", "w").write(gen(**U_))
```
